```python
import torch

def _softmax(x, axis=-1):
    return torch.softmax(x, dim=axis)

def _gelu(x):
    return torch.nn.functional.gelu(x, approximate='tanh')

def _silu(x):
    return torch.nn.functional.silu(x)

def _sigmoid(x):
    return torch.sigmoid(x)

def _layernorm(x, axis=-1, eps=1e-05):
    m = x.mean(dim=axis, keepdim=True)
    v = x.var(dim=axis, keepdim=True, unbiased=False)
    return (x - m) / torch.sqrt(v + eps)

def _scatter_add(tgt, idx, src, axis=0):
    return tgt.clone().index_add_(axis, idx, src)

def _segment_sum(src, seg, n):
    out = torch.zeros((n,) + src.shape[1:], dtype=src.dtype)
    return out.index_add_(0, seg, src)

def _pad(x, pw):
    flat = tuple((v for pair in reversed(pw) for v in pair))
    return torch.nn.functional.pad(x, flat)
kernel_name = 'adaLN_cond__sliding_block__swiglu_ffn__prompt'

def setup_inputs():

    _w = lambda a: (lambda t: t.to(torch.bfloat16) if t.is_floating_point() else t)(torch.as_tensor(a))

    def _A_setup():
        B, S, D = (1, 2048, 640)
        return {'x': _w((lambda *s: torch.randn(*s, dtype=torch.bfloat16) * 0.05)(B, S, D)), 'wqkv': _w((lambda *s: torch.randn(*s, dtype=torch.bfloat16) * 0.05)(D, 3 * D)), 'wo': _w((lambda *s: torch.randn(*s, dtype=torch.bfloat16) * 0.05)(D, D))}
    _A_in = _A_setup()

    def _B_setup():
        B, S, D, F = (1, 2048, 640, 1728)
        return {'x': _w((lambda *s: torch.randn(*s, dtype=torch.bfloat16) * 0.05)(B, S, D)), 'w_gate': _w((lambda *s: torch.randn(*s, dtype=torch.bfloat16) * 0.05)(D, F)), 'w_up': _w((lambda *s: torch.randn(*s, dtype=torch.bfloat16) * 0.05)(D, F)), 'w_down': _w((lambda *s: torch.randn(*s, dtype=torch.bfloat16) * 0.05)(F, D))}
    _B_in = _B_setup()
    return {'A_x': _A_in['x'], 'A_wqkv': _A_in['wqkv'], 'A_wo': _A_in['wo'], 'B_x': _B_in['x'], 'B_w_gate': _B_in['w_gate'], 'B_w_up': _B_in['w_up'], 'B_w_down': _B_in['w_down'], 'c': _w((lambda *s: torch.randn(*s, dtype=torch.bfloat16) * 0.1)(1, 640) * 8.0), 'w_mod': _w((lambda *s: torch.randn(*s, dtype=torch.bfloat16) * 0.1)(640, 6 * 640) * 640 ** (-0.5) * 8.0)}

def reference(A_x, A_wqkv, A_wo, B_x, B_w_gate, B_w_up, B_w_down, c, w_mod):

    def _A_ref(x, wqkv, wo):
        B, S, D = x.shape
        H = 32
        Dh = D // H
        W = 256
        qkv = (lambda x, *d: x.permute(*d))((x @ wqkv).reshape(B, S, 3, H, Dh), 2, 0, 3, 1, 4)
        q, k, v = (qkv[0], qkv[1], qkv[2])
        scores = torch.einsum('bhqd,bhkd->bhqk', q, k) * Dh ** (-0.5)
        idx = torch.arange(S)
        mask = (idx[:, None] - idx[None, :] >= 0) & (idx[:, None] - idx[None, :] < W)
        scores = torch.where(mask[None, None], scores, -1000000000.0)
        p = _softmax(scores, axis=-1)
        o = torch.einsum('bhqk,bhkd->bhqd', p, v)
        return (lambda x, *d: x.permute(*d))(o, 0, 2, 1, 3).reshape(B, S, D) @ wo

    def _B_ref(x, w_gate, w_up, w_down):
        g = _silu(x @ w_gate)
        u = x @ w_up
        return g * u @ w_down
    x = A_x
    mod = (_silu(c) @ w_mod).reshape(c.shape[0], 6, 1, -1)
    sa, ca, ga, sb, cb, gb = (mod[:, 0].clone(), mod[:, 1].clone(), mod[:, 2].clone(), mod[:, 3].clone(), mod[:, 4].clone(), mod[:, 5].clone())
    h = _layernorm(x, axis=-1) * (1 + ca) + sa
    x = x + ga * _A_ref(h, A_wqkv, A_wo)
    h = _layernorm(x, axis=-1) * (1 + cb) + sb
    x = x + gb * _B_ref(h, B_w_gate, B_w_up, B_w_down)
    return x
```

```python
class K:
    def __init__(self, name, grid, block, lds, vgpr=256, sgpr=102, accum=None):
        self.name=name; self.grid=grid; self.block=block; self.lds=lds
        self.lines=[]; self.vgpr=vgpr; self.sgpr=sgpr; self.accum=accum
        self._lab=0
    def e(self, s, *a):
        if a: s = s % a
        for l in s.split("\n"):
            self.lines.append("    "+l.strip() if not l.strip().endswith(":") else l.strip())
    def c(self, s): self.lines.append("    ; "+s)
    def label(self, base="L"):
        self._lab+=1
        return "%s_%s_%d"%(self.name, base, self._lab)
    def put(self, lab): self.lines.append(lab+":")
    def text(self):
        return ".p2align 8\n.globl %s\n.type %s,@function\n%s:\n"%(self.name,self.name,self.name)+"\n".join(self.lines)+"\n"
    def desc(self):
        acc = self.accum if self.accum is not None else (min(self.vgpr,256)+3)//4*4
        return (".p2align 6\n.amdhsa_kernel %s\n  .amdhsa_next_free_vgpr %d\n  .amdhsa_next_free_sgpr %d\n  .amdhsa_accum_offset %d\n"
                "  .amdhsa_group_segment_fixed_size 0\n  .amdhsa_kernarg_size 96\n  .amdhsa_user_sgpr_count 2\n"
                "  .amdhsa_user_sgpr_kernarg_segment_ptr 1\n  .amdhsa_system_sgpr_workgroup_id_x 1\n"
                "  .amdhsa_float_denorm_mode_32 3\n  .amdhsa_float_denorm_mode_16_64 3\n.end_amdhsa_kernel\n")%(self.name,self.vgpr,self.sgpr,acc)
    def launch_line(self):
        return "; @launch kernel=%s grid=(%d,1,1) block=(%d,1,1) lds=%d"%(self.name,self.grid,self.block,self.lds)

def write_file(path, kernels, order=None, header=""):
    order = order or kernels
    s = header
    for k in order: s += k.launch_line()+"\n"
    s += '.amdgcn_target "amdgcn-amd-amdhsa--gfx950"\n.text\n'
    for k in kernels: s += k.text()
    s += '.section .rodata,"a"\n'
    for k in kernels: s += k.desc()
    open(path,"w").write(s)

A_X,A_WQKV,A_WO,B_X,B_WG,B_WU,B_WD,C_IN,W_MOD,D_OUT,D_DBG,D_WS = [i*8 for i in range(12)]
def srd(k, sreg, ptr_s, nbytes):
    k.e("s_mov_b32 s%d, s%d", sreg, ptr_s)
    k.e("s_and_b32 s%d, s%d, 0xffff", sreg+1, ptr_s+1)
    k.e("s_mov_b32 s%d, 0x%x", sreg+2, nbytes)
    k.e("s_mov_b32 s%d, 0x20000", sreg+3)
```

```python
import re
REG = re.compile(r'^(-|abs\(|\|)?([vsa])(\d+|\[(\d+):(\d+)\])')
def regs(tok):
    tok = tok.strip()
    if tok in ("vcc",): return [("s","vcc_lo"),("s","vcc_hi")]
    if tok in ("vcc_lo","vcc_hi"): return [("s",tok)]
    if tok == "exec": return [("s","exec")]
    if tok == "m0": return [("s","m0")]
    m = REG.match(tok)
    if not m: return []
    t = m.group(2)
    if m.group(4) is not None: return [(t,i) for i in range(int(m.group(4)), int(m.group(5))+1)]
    return [(t,int(m.group(3)))]
TRANS = ("v_exp_f32","v_log_f32","v_rcp_f32","v_rsq_f32","v_sqrt_f32","v_sin_f32","v_cos_f32")
class I:
    def __init__(self, line):
        self.line = line
        s = line.split(";")[0].strip()
        self.kind = None; self.dst=[]; self.src=[]; self.srcC=[]; self.srcAB=[]; self.passes=0; self.states=1
        self.dpp=False; self.mn=""; self.data=[]
        if not s or s.startswith("."): self.kind="none"; self.states=0; return
        if s.endswith(":"): self.kind="label"; self.states=0; return
        p = s.split(None,1); mn = p[0]; self.mn = mn
        ops = [o.strip() for o in p[1].split(",")] if len(p)>1 else []
        mods = ""
        if ops:
            q = ops[-1].split(None,1); ops[-1]=q[0]; mods = q[1] if len(q)>1 else ""
        self.mods = mods
        R = [regs(o) for o in ops]
        if mn=="s_nop": self.kind="salu"; self.states=int(ops[0],0)+1; return
        if mn.startswith("v_mfma"):
            self.kind="mfma"; self.dst=R[0]; self.srcAB=R[1]+R[2]; self.srcC=R[3]; self.src=self.srcAB+self.srcC
            self.passes = 8 if "32x32" in mn else 4
            return
        if mn.startswith("v_"):
            self.kind="valu"
            base = mn.replace("_e32","").replace("_e64","").replace("_dpp","").replace("_sdwa","")
            self.base = base
            if "quad_perm" in mods or "row_" in mods or "wave_" in mods or mn.endswith("_dpp"): self.dpp=True
            if base.startswith("v_cmp"):
                self.dst=R[0]; self.src=sum(R[1:],[])
                if base.startswith("v_cmpx"): self.dst = self.dst+[("s","exec")]
            elif base in ("v_add_co_u32","v_sub_co_u32","v_addc_co_u32","v_subb_co_u32","v_div_scale_f32","v_mad_u64_u32"):
                self.dst=R[0]+R[1]; self.src=sum(R[2:],[])
            elif base.startswith("v_permlane") and "swap" in base:
                self.dst=R[0]+R[1]; self.src=R[0]+R[1]
            else:
                self.dst=R[0]; self.src=sum(R[1:],[])
                if base in ("v_fmac_f32","v_dot2c_f32_bf16","v_writelane_b32") or self.dpp: self.src=self.src+R[0]
                if base=="v_cndmask_b32" and len(ops)==3: self.src=self.src+regs("vcc")
            self.trans = base in TRANS
            return
        if mn.startswith("buffer_") or mn.startswith("global_"):
            self.kind="vmem"
            lds = " lds" in (" "+mods)
            if mn.startswith("buffer_inv") or mn.startswith("buffer_wbl2"): return
            if "load" in mn and not lds and not mn.startswith("global_load_lds"):
                self.dst=R[0]; self.src=sum(R[1:],[])
            elif "atomic" in mn and "sc0" in mods and mn.startswith("buffer"):
                self.dst=R[0]; self.src=sum(R,[])
            else:
                self.src=sum(R,[])
                if "store" in mn:
                    self.data = R[0] if mn.startswith("buffer") else R[1]
            if lds or mn.startswith("global_load_lds"): self.src=self.src+[("s","m0")]; self.lds=True
            return
        if mn.startswith("ds_"):
            self.kind="ds"
            if "read" in mn or "bpermute" in mn or "permute" in mn or "swizzle" in mn: self.dst=R[0]; self.src=sum(R[1:],[])
            else: self.src=sum(R,[])
            return
        if mn.startswith("s_"):
            self.kind="salu"
            if mn.startswith("s_cbranch") or mn=="s_branch" or mn in("s_endpgm","s_setpc_b64"): self.kind="branch"; return
            if mn.startswith(("s_waitcnt","s_barrier","s_sleep","s_setprio","s_cmp","s_bitcmp")): self.src=sum(R,[]); return
            self.dst=R[0] if R else []; self.src=sum(R[1:],[])
            if "saveexec" in mn: self.dst=self.dst+[("s","exec")]
            return
        raise Exception("unknown instr: "+line)
def ov(a,b): return bool(set(a)&set(b))
def need(p, c):
    n = 0
    vd = [r for r in p.dst if r[0] in "va"]; sd = [r for r in p.dst if r[0]=="s"]
    if p.kind=="valu":
        if c.kind=="mfma" and ov(vd, c.src): n=max(n,2)
        if c.kind=="mfma" and ("s","exec") in sd: n=max(n,4)
        if c.kind=="valu":
            if c.dpp and ov(vd, c.src): n=max(n,2)
            if c.dpp and ("s","exec") in sd: n=max(n,5)
            if c.base.startswith("v_permlane") and ov(vd,c.src): n=max(n,2)
            if c.base in ("v_readfirstlane_b32","v_readlane_b32") and ov(vd,c.src): n=max(n,1)
            if ov(sd,c.src): n=max(n, 4 if c.base in("v_readlane_b32","v_writelane_b32","v_div_fmas_f32") else 2)
            if ("s","exec") in sd and (c.base in ("v_readfirstlane_b32","v_readlane_b32","v_writelane_b32") or c.base.startswith("v_permlane")): n=max(n,4)
            if p.trans and not c.trans and ov(vd,c.src): n=max(n,1)
            if p.trans and c.trans and ov(vd,c.src): n=max(n,1)
            if ("op_sel" in p.mods or "dst_sel" in p.mods) and (ov(vd,c.src) or ov(vd,c.dst)): n=max(n,1)
            if p.base.startswith("v_dot2"):
                if ov(vd,c.src) or ov(vd,c.dst):
                    if not (c.base==p.base and not ov(vd, c.src[:-1] if p.base=="v_dot2c_f32_bf16" else c.src[:-1])): n=max(n,3)
        if c.kind in("vmem","ds") and p.trans and ov(vd,c.src): n=max(n,1)
        if c.kind in("vmem","ds","mfma") and p.base.startswith("v_dot2") and ov(vd,c.src): n=max(n,3)
        if c.kind=="vmem" and ov(sd,c.src): n=max(n,5)
        if c.kind=="salu" and ov(sd,c.src): n=max(n,1)
    if p.kind=="salu":
        if ("s","m0") in sd and c.kind=="vmem" and ("s","m0") in c.src: n=max(n,1)
    if p.kind=="vmem" and len(p.data)>=3:
        if c.kind=="valu" and ov(p.data,c.dst): n=max(n,2)
        elif ov(p.data,c.dst): n=max(n,1)
    if p.kind=="mfma":
        big = {4:8, 8:12}[p.passes]
        if c.kind=="mfma":
            if ov(p.dst,c.srcAB): n=max(n,big)
            if ov(p.dst,c.srcC):
                if not (c.srcC==p.dst and c.passes==p.passes): n=max(n,{4:6,8:10}[p.passes])
            elif ov(p.dst,c.dst): n=max(n,{4:6,8:10}[p.passes])
        elif c.kind=="valu":
            if ov(p.dst,c.src) or ov(p.dst,c.dst): n=max(n,big)
            if ov(p.srcC,c.dst): n=max(n,{4:3,8:7}[p.passes])
        elif c.kind in("vmem","ds"):
            if ov(p.dst,c.src) or ov(p.dst,c.dst): n=max(n,big)
            if ov(p.srcC,c.dst): n=max(n,{4:3,8:7}[p.passes])
    return n
def fix(lines, verbose=False):
    out=[]; hist=[]
    pos=0; nins=0
    for l in lines:
        c = I(l)
        if c.kind in("none","label"): out.append(l); continue
        req=0
        for p,ppos in hist:
            d = pos-ppos
            n = need(p,c)
            if n>d: req=max(req,n-d)
        if req>0:
            nins+=1
            r=req
            while r>0:
                t=min(r,16); out.append("    s_nop %d"%(t-1)); r-=t
            pos+=req
        out.append(l); pos+=c.states
        hist.append((c,pos))
        hist=[(p,pp) for p,pp in hist if pos-pp<20]
        if c.mn in("s_branch","s_endpgm"): hist=[]
    return out, nins
```

```python
import sys, math
from asmgen import *
import hazard

MODP = 0x0
CSB  = 0x10000
MODF = 0x18000
STAT = 0x20000
WO_R = 0x100000
WD_R = 0x200000
WGU_R= 0x500000
QKV  = 0xA00000
OATT = 0x1200000
A2   = 0x1500000
X1P  = 0x1800000
ACT  = 0x1B00000
WS_USED = 0x2200000

P_X,P_WQKV,P_WO,P_BX,P_WG,P_WU,P_WD,P_C,P_WMOD,P_OUT,P_DBG,P_WS = 4,6,8,10,12,14,16,18,20,22,24,26
S_WID = 3
QSCALE = math.log2(math.e)/math.sqrt(20.0)
import struct
def f2u(x): return struct.unpack("<I", struct.pack("<f", x))[0]

class G(K):
    def __init__(self, name, lds, grid=256):
        super().__init__(name, grid, 512, lds, vgpr=256, sgpr=102)
        self.end = self.label("end")
    def prologue(self, nwg=256):
        self.e("s_cmp_ge_u32 s2, %d", nwg); self.e("s_cbranch_scc1 %s", self.end)
        self.e("s_load_dwordx16 s[4:19], s[0:1], 0"); self.e("s_load_dwordx8 s[20:27], s[0:1], 64")
        self.e("v_lshrrev_b32 v1, 6, v0"); self.e("v_and_b32 v0, 63, v0"); self.e("v_readfirstlane_b32 s%d, v1", S_WID)
        self.e("s_waitcnt lgkmcnt(0)")
    def srd(self, s, p, n): srd(self, s, p, n)
    def finish(self):
        self.put(self.end); self.e("s_endpgm")
        self.lines, n = hazard.fix(self.lines)
    def divmod_s(self, q, r, x, d, tmp):
        self.e("s_mul_hi_u32 s%d, s%d, 0x%x", q, x, (1<<32)//d+1)
        self.e("s_mul_i32 s%d, s%d, %d", tmp, q, d); self.e("s_sub_u32 s%d, s%d, s%d", r, x, tmp)
    def dma(self, voff, srd_, soff, ldsaddr_s=None, ldsaddr=None, off=0, flags=""):
        if ldsaddr is not None:
            if isinstance(ldsaddr, tuple): self.e("s_add_u32 m0, s%d, %d", ldsaddr[0], ldsaddr[1])
            else: self.e("s_mov_b32 m0, %d", ldsaddr)
        self.e("buffer_load_dwordx4 v%d, s[%d:%d], %s offen%s %s lds", voff, srd_, srd_+3, soff, (" offset:%d"%off) if off else "", flags)

def vr(a, n=4): return "v[%d:%d]"%(a, a+n-1)

def k_prep():
    k = G("prep_kernel", 8192*4+2048)
    k.prologue()
    SW=28; S1=32; S2=36
    k.srd(SW, P_WS, WS_USED)
    rep = k.label("rep")
    k.e("s_cmp_ge_u32 s%d, 4", S_WID); k.e("s_cbranch_scc1 %s", rep)
    k.e("s_cmp_ge_u32 s2, 240"); k.e("s_cbranch_scc1 %s", k.end)
    k.srd(S1, P_WMOD, 640*7680); k.srd(S2, P_C, 1280)
    k.divmod_s(40, 41, 2, 60, 42)
    k.e("s_mul_i32 s42, s40, 160"); k.e("s_mul_i32 s43, s%d, 40", S_WID); k.e("s_add_u32 s42, s42, s43")
    k.e("v_lshrrev_b32 v1, 3, v0"); k.e("v_and_b32 v2, 7, v0")
    k.e("v_add_u32 v1, s42, v1")
    k.e("v_lshlrev_b32 v3, 1, v1")
    k.e("v_mul_u32_u24 v4, 7680, v1"); k.e("v_lshl_add_u32 v4, v2, 4, v4")
    k.e("s_lshl_b32 s44, s41, 7")
    for i in range(5): k.e("buffer_load_ushort v%d, v3, s[%d:%d], 0 offen offset:%d", 8+i, S2, S2+3, i*16)
    for i in range(5):
        k.e("buffer_load_dwordx4 %s, v4, s[%d:%d], s44 offen nt", vr(16+4*i), S1, S1+3)
        if i<4: k.e("s_add_u32 s44, s44, %d", 8*7680)
    k.e("s_waitcnt vmcnt(5)")
    for i in range(5):
        k.e("v_lshlrev_b32 v%d, 16, v%d", 8+i, 8+i)
        k.e("v_mul_f32 v5, 0x%x, v%d", f2u(-math.log2(math.e)), 8+i)
        k.e("v_exp_f32 v5, v5"); k.e("v_add_f32 v5, 1.0, v5"); k.e("v_rcp_f32 v5, v5")
        k.e("v_mul_f32 v5, v5, v%d", 8+i)
        k.e("v_cvt_pk_bf16_f32 v5, v5, v5"); k.e("v_lshlrev_b32 v%d, 16, v5", 8+i)
    A=40
    for i in range(5):
        k.e("s_waitcnt vmcnt(%d)", 4-i)
        for j in range(4):
            k.e("v_lshlrev_b32 v5, 16, v%d", 16+4*i+j); k.e("v_and_b32 v6, 0xffff0000, v%d", 16+4*i+j)
            if i==0:
                k.e("v_mul_f32 v%d, v5, v%d", A+2*j, 8+i); k.e("v_mul_f32 v%d, v6, v%d", A+2*j+1, 8+i)
            else:
                k.e("v_fmac_f32 v%d, v5, v%d", A+2*j, 8+i); k.e("v_fmac_f32 v%d, v6, v%d", A+2*j+1, 8+i)
    for j in range(4): k.e("v_permlane32_swap_b32 v%d, v%d", A+j, A+j+4)
    for j in range(4): k.e("v_add_f32 v%d, v%d, v%d", A+j, A+j, A+j+4)
    for j in range(2): k.e("v_permlane16_swap_b32 v%d, v%d", A+j, A+j+2)
    for j in range(2): k.e("v_add_f32 v%d, v%d, v%d", A+j, A+j, A+j+2)
    for j in range(2): k.e("v_add_f32_dpp v%d, v%d, v%d row_ror:8 row_mask:0xf bank_mask:0xf", A+j, A+j, A+j)
    k.e("v_lshrrev_b32 v5, 4, v0"); k.e("v_lshlrev_b32 v5, 3, v5"); k.e("v_lshl_add_u32 v5, v2, 5, v5")
    k.e("s_lshl_b32 s45, s%d, 8", S_WID); k.e("v_add_u32 v5, s45, v5")
    k.e("ds_write_b64 v5, v[%d:%d] offset:32768", A, A+1)
    k.e("s_waitcnt lgkmcnt(0)"); k.e("s_barrier")
    k.e("s_cmp_lg_u32 s%d, 0", S_WID); k.e("s_cbranch_scc1 %s", k.end)
    k.e("v_lshlrev_b32 v5, 2, v0")
    for j in range(4): k.e("ds_read_b32 v%d, v5 offset:%d", 8+j, 32768+256*j)
    k.e("s_waitcnt lgkmcnt(0)")
    k.e("v_add_f32 v8, v8, v9"); k.e("v_add_f32 v10, v10, v11"); k.e("v_add_f32 v8, v8, v10")
    k.e("s_mul_i32 s42, s40, %d", 3840*4); k.e("s_lshl_b32 s43, s41, 8"); k.e("s_add_u32 s42, s42, s43")
    if MODP: k.e("s_add_u32 s42, s42, %d", MODP)
    k.e("buffer_store_dword v8, v5, s[%d:%d], s42 offen", SW, SW+3)
    k.e("s_endpgm")
    k.put(rep)
    repack(k, SW, S1, S2, 0)
    k.finish()
    return k

def repack(k, SW, S1, S2, ldsbase):
    k.e("s_lshl_b32 s40, s2, 2"); k.e("s_add_u32 s40, s40, s%d", S_WID); k.e("s_sub_u32 s40, s40, 4")
    k.e("s_sub_u32 s41, s%d, 4", S_WID); k.e("s_lshl_b32 s41, s41, 13")
    if ldsbase: k.e("s_add_u32 s41, s41, %d", ldsbase)
    k.e("v_lshrrev_b32 v1, 3, v0"); k.e("v_and_b32 v2, 7, v0")
    k.e("v_mul_u32_u24 v3, 3456, v1"); k.e("v_lshl_add_u32 v3, v2, 4, v3")
    k.e("v_mul_u32_u24 v4, 1280, v1"); k.e("v_lshl_add_u32 v4, v2, 4, v4")
    k.e("v_lshrrev_b32 v5, 4, v0"); k.e("v_bfe_u32 v6, v0, 2, 2"); k.e("v_and_b32 v7, 3, v0")
    k.e("v_lshlrev_b32 v7, 3, v7"); k.e("v_lshl_add_u32 v7, v6, 7, v7"); k.e("v_add_u32 v7, s41, v7")
    k.e("v_and_b32 v8, 1, v5"); k.e("v_lshrrev_b32 v9, 1, v5")
    k.e("v_lshl_add_u32 v10, v5, 10, v7")
    k.e("v_lshl_add_u32 v11, v9, 11, v7"); k.e("v_lshl_add_u32 v11, v8, 9, v11")
    k.e("v_lshl_add_u32 v12, v8, 11, v7"); k.e("v_lshl_add_u32 v12, v9, 10, v12")
    k.e("v_lshlrev_b32 v13, 4, v0")
    k.srd(S1, P_WG, 640*3456); k.srd(S2, P_WU, 640*3456)
    def gu_load(q, lo):
        k.divmod_s(44, 45, q, 27, 46)
        k.e("s_mul_i32 s46, s44, %d", 16*3456); k.e("s_lshl_b32 s47, s45, 7"); k.e("s_add_u32 s46, s46, s47")
        k.e("s_add_u32 s47, s46, %d", 8*3456)
        k.dma(3, S1, "s46", ldsaddr=(41, lo), flags="nt"); k.dma(3, S1, "s47", ldsaddr=(41, lo+1024), flags="nt")
        k.dma(3, S2, "s46", ldsaddr=(41, lo+2048), flags="nt"); k.dma(3, S2, "s47", ldsaddr=(41, lo+3072), flags="nt")
    def gu_dst(d):
        k.e("s_mul_i32 s46, s45, %d", 4*40*1024); k.e("s_lshl_b32 s47, s44, 10"); k.e("s_add_u32 s46, s46, s47")
        for f in range(4): k.e("s_add_u32 s%d, s46, %d", d+f, WGU_R+f*40*1024)
    def out(areg, second, lo, d, rb):
        for f in range(4):
            k.e("ds_read_b64_tr_b16 v[%d:%d], v%d offset:%d", rb+4*f, rb+4*f+1, areg, lo+f*32)
            k.e("ds_read_b64_tr_b16 v[%d:%d], v%d offset:%d", rb+4*f+2, rb+4*f+3, areg, lo+f*32+second*128)
        for f in range(4):
            k.e("s_waitcnt lgkmcnt(%d)", 6-2*f)
            k.e("buffer_store_dwordx4 %s, v13, s[%d:%d], s%d offen", vr(rb+4*f), SW, SW+3, d+f)
    gu_load(40, 0); gu_dst(48)
    k.e("s_add_u32 s40, s40, 1024")
    l_dn = k.label("dn"); l_wo = k.label("wo"); l_no = k.label("no")
    k.e("s_cmp_ge_u32 s40, 1820"); k.e("s_cbranch_scc1 %s", l_no)
    k.e("s_cmp_ge_u32 s40, 1620"); k.e("s_cbranch_scc1 %s", l_wo)
    k.e("s_cmp_ge_u32 s40, 1080"); k.e("s_cbranch_scc1 %s", l_dn)
    gu_load(40, 4096); gu_dst(52)
    k.e("s_barrier")
    k.e("s_waitcnt vmcnt(4)"); out(12, 4, 0, 48, 16)
    k.e("s_waitcnt vmcnt(4)"); out(12, 4, 4096, 52, 32)
    k.e("s_endpgm")
    def wd_block(ptr, nrows, q0, base, areg, second):
        KS = nrows//32
        k.srd(S1, ptr, nrows*1280)
        k.e("s_sub_u32 s40, s40, %d", q0)
        k.divmod_s(44, 45, 40, 10, 46)
        k.e("s_mul_i32 s46, s44, %d", 32*1280); k.e("s_lshl_b32 s47, s45, 7"); k.e("s_add_u32 s46, s46, s47")
        for i in range(4):
            k.dma(4, S1, "s46", ldsaddr=(41, 4096+i*1024), flags="nt")
            if i<3: k.e("s_add_u32 s46, s46, %d", 8*1280)
        for f in range(4):
            k.e("s_lshl_b32 s46, s45, 2"); k.e("s_add_u32 s46, s46, %d", f)
            k.divmod_s(47, 56, 46, 5, 57)
            k.e("s_mul_i32 s47, s47, %d", KS); k.e("s_add_u32 s47, s47, s44"); k.e("s_mul_i32 s47, s47, 5"); k.e("s_add_u32 s47, s47, s56")
            k.e("s_lshl_b32 s47, s47, 10"); k.e("s_add_u32 s%d, s47, %d", 52+f, base)
        k.e("s_barrier")
        k.e("s_waitcnt vmcnt(4)"); out(12, 4, 0, 48, 16)
        k.e("s_waitcnt vmcnt(4)"); out(areg, second, 4096, 52, 32)
        k.e("s_endpgm")
    k.put(l_dn); wd_block(P_WD, 1728, 1080, WD_R, 11, 8)
    k.put(l_wo); wd_block(P_WO, 640, 1620, WO_R, 10, 4)
    k.put(l_no)
    k.e("s_barrier")
    k.e("s_waitcnt vmcnt(0)"); out(12, 4, 0, 48, 16)


def bf16_round(k, d, s_):
    k.e("v_cvt_pk_bf16_f32 v%d, v%d, v%d", d, s_, s_); k.e("v_lshlrev_b32 v%d, 16, v%d", d, d)

def mod_finalize(k, SW, first, one_from, ldsaddr, as_bf16=False, swap_rows=False, nvals=1280, tb=8, flags=""):
    n = nvals//256
    k.e("s_lshl_b32 s40, s%d, 6", S_WID); k.e("v_add_u32 v1, s40, v0"); k.e("v_lshlrev_b32 v2, 2, v1")
    for p in range(4):
        k.e("s_mov_b32 s41, %d", MODP + (p*3840+first)*4)
        for i in range(n):
            if i==4: k.e("s_add_u32 s41, s41, 4096")
            k.e("buffer_load_dword v%d, v2, s[%d:%d], s41 offen offset:%d %s", tb+p*n+i, SW, SW+3, (i%4)*1024, flags)
    k.e("s_waitcnt vmcnt(0)")
    for i in range(n):
        a = tb+i
        k.e("v_add_f32 v%d, v%d, v%d", a, a, a+n); k.e("v_add_f32 v%d, v%d, v%d", a+2*n, a+2*n, a+3*n); k.e("v_add_f32 v%d, v%d, v%d", a, a, a+2*n)
        bf16_round(k, a, a)
        lo, hi = 256*i, 256*i+255
        if lo >= one_from: k.e("v_add_f32 v%d, 1.0, v%d", a, a)
        elif hi >= one_from:
            k.e("v_cmp_le_u32 vcc, %d, v1", one_from-lo); k.e("v_cndmask_b32 v3, 0, 1.0, vcc"); k.e("v_add_f32 v%d, v3, v%d", a, a)
        if as_bf16:
            k.e("v_cvt_pk_bf16_f32 v%d, v%d, v%d", a, a, a)
            k.e("v_lshlrev_b32 v3, 1, v1")
            k.e("ds_write_b16 v3, v%d offset:%d", a, ldsaddr+512*i)
        else:
            if hi >= one_from: bf16_round(k, a, a)
            k.e("v_add_u32 v3, %d, v2", ldsaddr+1024*i)
            k.e("ds_write_b32 v3, v%d", a)

def k_qkv():
    NB, NA = 6, 3
    LB, LA = 0, NB*16384
    LP = LA + NA*16384
    k = G("qkv_kernel", LP+5120)
    k.prologue()
    SW, SX, SQ = 28, 32, 36
    RB, CB = 60, 61
    k.srd(SW, P_WS, WS_USED); k.srd(SX, P_X, 2048*1280); k.srd(SQ, P_WQKV, 640*3840)
    k.e("s_and_b32 s40, s2, 7"); k.e("s_lshr_b32 s41, s2, 3")
    k.e("s_lshr_b32 s42, s40, 1"); k.e("s_lshl_b32 s42, s42, 2"); k.e("s_and_b32 s43, s41, 3"); k.e("s_add_u32 s%d, s42, s43", RB)
    k.e("s_and_b32 s42, s40, 1"); k.e("s_lshl_b32 s42, s42, 3"); k.e("s_lshr_b32 s43, s41, 2"); k.e("s_add_u32 s%d, s42, s43", CB)
    l_cs = k.label("csb"); l_ld = k.label("loader")
    k.e("s_cmp_ge_u32 s%d, 15", CB); k.e("s_cbranch_scc1 %s", l_cs)
    k.e("s_cmp_ge_u32 s%d, 4", S_WID); k.e("s_cbranch_scc1 %s", l_ld)
    mod_finalize(k, SW, 0, 640, LP)
    k.e("s_waitcnt lgkmcnt(0)"); k.e("s_barrier")
    k.e("s_and_b32 s42, s%d, 1", S_WID); k.e("s_lshr_b32 s43, s%d, 1", S_WID)
    k.e("v_and_b32 v1, 31, v0"); k.e("v_lshrrev_b32 v2, 5, v0")
    AA = 4
    k.e("s_lshl_b32 s44, s42, 13"); k.e("s_add_u32 s44, s44, %d", LA)
    for q in range(4):
        k.e("v_add_u32 v3, %d, v2", 2*q); k.e("v_xor_b32 v%d, v1, v3", AA+q); k.e("v_lshlrev_b32 v%d, 4, v%d", AA+q, AA+q)
        k.e("v_lshl_add_u32 v%d, v3, 9, v%d", AA+q, AA+q); k.e("v_add_u32 v%d, s44, v%d", AA+q, AA+q)
    BA = 8
    k.e("v_bfe_u32 v12, v0, 2, 2"); k.e("v_bfe_u32 v13, v0, 4, 1"); k.e("v_and_b32 v14, 3, v0")
    for i in range(2):
        k.e("s_lshl_b32 s45, s43, 1"); k.e("s_add_u32 s45, s45, %d", i)
        k.e("v_xor_b32 v3, s45, v12"); k.e("v_lshlrev_b32 v3, 6, v3")
        k.e("v_lshl_add_u32 v3, v13, 5, v3"); k.e("v_lshl_add_u32 v3, v14, 3, v3")
        k.e("v_lshl_add_u32 v3, v12, 8, v3"); k.e("v_lshl_add_u32 v%d, v2, 11, v3", BA+i)
        k.e("v_add_u32 v%d, 0x10000, v%d", BA+2+i, BA+i)
    ACC = 64; FR = 16
    def reads(kc):
        s = kc//4; q = kc%4; f = FR+16*(kc%3)
        r = []
        for j in range(2): r.append("ds_read_b128 %s, v%d offset:%d"%(vr(f+4*j), AA+q, (s%NA)*16384+j*4096))
        o = LB+(s%NB)*16384+q*4096
        hi = 2 if o>=65536 else 0
        for i in range(2):
            for z in range(2): r.append("ds_read_b64_tr_b16 %s, v%d offset:%d"%(vr(f+8+4*i+2*z,2), BA+hi+i, o%65536+z*1024))
        return r
    k.e("s_barrier")
    for l in reads(0)+reads(1): k.e(l)
    for kc in range(40):
        nx = []
        if kc+2<40:
            if (kc+2)%4==0: k.e("s_barrier")
            nx = reads(kc+2)
        k.e("s_waitcnt lgkmcnt(%d)", 6 if kc<39 else 0)
        f = FR+16*(kc%3)
        m = 0
        for i in range(2):
            for j in range(2):
                a = ACC+16*(2*i+j)
                k.e("v_mfma_f32_32x32x16_bf16 %s, %s, %s, %s", vr(a,16), vr(f+8+4*i), vr(f+4*j), vr(a,16) if kc else "0")
                for l in nx[2*m:2*m+2]: k.e(l)
                m += 1
    k.e("s_mov_b32 s46, 1.0"); k.e("s_cmp_lt_u32 s%d, 5", CB); k.e("s_cselect_b32 s46, 0x%x, s46", f2u(QSCALE)); k.e("s_mov_b32 s47, s46")
    for ii in range(4):
        k.e("v_add_u32 v3, %d, v2", 2*ii); k.e("v_lshlrev_b32 v12, 2, v3"); k.e("v_xor_b32 v12, v12, v1"); k.e("v_lshlrev_b32 v12, 3, v12")
        k.e("v_lshl_add_u32 v%d, v3, 8, v12", 4+ii)
    k.e("s_lshl_b32 s48, s%d, 2", RB); k.e("s_lshl_b32 s49, s42, 1"); k.e("s_add_u32 s48, s48, s49"); k.e("s_mul_i32 s48, s48, 122880")
    k.e("s_lshl_b32 s49, s%d, 13", CB); k.e("s_add_u32 s48, s48, s49"); k.e("s_lshl_b32 s49, s43, 12"); k.e("s_add_u32 s48, s48, s49")
    k.e("s_add_u32 s48, s48, %d", QKV); k.e("s_add_u32 s49, s48, 122880")
    n = 0
    for i in range(2):
        for j in range(2):
            a = ACC+16*(2*i+j)
            for ii in range(4):
                b = a+4*ii; d = 16+2*(n%8); n += 1
                k.e("v_pk_mul_f32 %s, %s, s[46:47]", vr(b,2), vr(b,2)); k.e("v_pk_mul_f32 %s, %s, s[46:47]", vr(b+2,2), vr(b+2,2))
                k.e("v_cvt_pk_bf16_f32 v%d, v%d, v%d", d, b, b+1); k.e("v_cvt_pk_bf16_f32 v%d, v%d, v%d", d+1, b+2, b+3)
                k.e("buffer_store_dwordx2 %s, v%d, s[%d:%d], s%d offen offset:%d", vr(d,2), 4+ii, SW, SW+3, 48+j, i*2048)
    k.e("s_endpgm")
    k.put(l_ld)
    X = 64; ST = 224; PR = 16; T = 48
    k.e("s_sub_u32 s42, s%d, 4", S_WID)
    k.e("v_lshrrev_b32 v1, 3, v0"); k.e("v_and_b32 v2, 7, v0")
    k.e("v_mul_u32_u24 v3, 1280, v1"); k.e("v_lshl_add_u32 v3, v2, 4, v3")
    k.e("s_lshl_b32 s43, s%d, 7", RB); k.e("s_lshl_b32 s44, s42, 5"); k.e("s_add_u32 s43, s43, s44"); k.e("s_mul_i32 s43, s43, 1280")
    for rg in range(4): k.e("s_add_u32 s%d, s43, %d", 48+rg, rg*8*1280)
    for s_ in range(10):
        for rg in range(4):
            k.e("buffer_load_dwordx4 %s, v3, s[%d:%d], s%d offen offset:%d", vr(X+16*s_+4*rg), SX, SX+3, 48+rg, s_*128)
    k.e("v_lshrrev_b32 v4, 4, v0"); k.e("v_and_b32 v5, 15, v0"); k.e("v_lshlrev_b32 v6, 2, v4"); k.e("v_xor_b32 v5, v5, v6")
    k.e("v_mul_u32_u24 v4, 3840, v4"); k.e("v_lshl_add_u32 v4, v5, 4, v4")
    k.e("s_mul_i32 s52, s42, %d", 16*3840); k.e("s_lshl_b32 s53, s%d, 8", CB); k.e("s_add_u32 s52, s52, s53")
    k.e("s_lshl_b32 s53, s42, 12")
    def wstage(s_):
        for i in range(4):
            k.e("s_add_u32 s54, s52, %d", (s_*64+i*4)*3840)
            k.dma(4, SQ, "s54", ldsaddr=(53, LB+(s_%NB)*16384+i*1024))
    for s_ in range(5): wstage(s_)
    k.e("s_mov_b32 s55, 0x3f803f80")
    for rg in range(8): k.e("v_mov_b32 v%d, 0", ST+rg)
    for s_ in range(10):
        k.e("s_waitcnt vmcnt(%d)", 60-4*(s_+1))
        for j in range(4):
            for rg in range(4):
                x = X+16*s_+4*rg+j
                k.e("v_dot2c_f32_bf16 v%d, s55, v%d", ST+2*rg, x); k.e("v_dot2c_f32_bf16 v%d, v%d, v%d", ST+2*rg+1, x, x)
    wstage(5)
    for mod_ in ("quad_perm:[1,0,3,2]", "quad_perm:[2,3,0,1]", "row_half_mirror"):
        for r in range(8): k.e("v_add_f32_dpp v%d, v%d, v%d %s row_mask:0xf bank_mask:0xf", ST+r, ST+r, ST+r, mod_)
    for rg in range(4):
        a, b = ST+2*rg, ST+2*rg+1
        k.e("v_mul_f32 v%d, 0x%x, v%d", a, f2u(1/640), a); k.e("v_mul_f32 v%d, 0x%x, v%d", b, f2u(1/640), b)
        k.e("v_fma_f32 v%d, -v%d, v%d, v%d", b, a, a, b); k.e("v_max_f32 v%d, 0, v%d", b, b); k.e("v_add_f32 v%d, 0x%x, v%d", b, f2u(1e-5), b)
        k.e("v_rsq_f32 v%d, v%d", b, b); k.e("v_mul_f32 v%d, v%d, v%d", a, a, b); k.e("v_sub_f32 v%d, 0, v%d", a, a)
    k.e("v_xor_b32 v5, v1, v2"); k.e("v_lshlrev_b32 v5, 4, v5"); k.e("v_lshl_add_u32 v5, v2, 9, v5")
    k.e("s_add_u32 s54, s53, %d", LA); k.e("v_add_u32 v5, s54, v5")
    k.e("v_lshlrev_b32 v6, 5, v2"); k.e("v_add_u32 v6, %d, v6", LP)
    k.e("s_barrier")
    def pread(s_):
        p = PR+16*(s_%2)
        k.e("ds_read_b128 %s, v6 offset:%d", vr(p), 2560+s_*256); k.e("ds_read_b128 %s, v6 offset:%d", vr(p+4), 2560+s_*256+16)
        k.e("ds_read_b128 %s, v6 offset:%d", vr(p+8), s_*256); k.e("ds_read_b128 %s, v6 offset:%d", vr(p+12), s_*256+16)
    pread(0)
    issued = 6
    for j_ in range(10):
        k.e("s_waitcnt lgkmcnt(0)")
        if j_+1<10: pread(j_+1)
        p = PR+16*(j_%2)
        for rg in range(4):
            x = X+16*j_+4*rg; t = T+8*(rg%2)
            for j in range(4):
                k.e("v_lshlrev_b32 v%d, 16, v%d", t+2*j, x+j); k.e("v_and_b32 v%d, 0xffff0000, v%d", t+2*j+1, x+j)
            for j in range(8): k.e("v_fma_f32 v%d, v%d, v%d, v%d", t+j, t+j, ST+2*rg+1, ST+2*rg)
            for j in range(8): k.e("v_fma_f32 v%d, v%d, v%d, v%d", t+j, t+j, p+j, p+8+j)
            for j in range(4): k.e("v_cvt_pk_bf16_f32 v%d, v%d, v%d", x+j, t+2*j, t+2*j+1)
            k.e("ds_write_b128 v5, %s offset:%d", vr(x), (j_%NA)*16384+rg*128)
        k.e("s_waitcnt vmcnt(%d) lgkmcnt(0)", 4*(issued-j_-1))
        k.e("s_barrier")
        nxt = j_-2+NB
        if j_>=2 and nxt<10: wstage(nxt); issued += 1
    k.e("s_endpgm")
    k.put(l_cs)
    l_sk = k.label("sk")
    k.e("s_lshl_b32 s50, s%d, 3", RB); k.e("s_add_u32 s50, s50, s%d", S_WID)
    k.e("s_mul_i32 s51, s50, %d", 40*1024); k.e("s_add_u32 s51, s51, %d", WGU_R)
    k.e("v_lshlrev_b32 v40, 4, v0")
    for kc in range(40):
        if kc%4==0 and kc: k.e("s_add_u32 s51, s51, 4096")
        k.e("buffer_load_dwordx4 %s, v40, s[%d:%d], s51 offen offset:%d", vr(64+4*kc), SW, SW+3, (kc%4)*1024)
    l_mf = k.label("mf")
    k.e("s_cmp_ge_u32 s50, 124"); k.e("s_cbranch_scc1 %s", l_mf)
    k.e("s_cmp_ge_u32 s%d, 4", S_WID); k.e("s_cbranch_scc1 %s", l_sk)
    mod_finalize(k, SW, 1920, 640, 0, as_bf16=True)
    k.put(l_sk)
    k.e("s_waitcnt vmcnt(0) lgkmcnt(0)"); k.e("s_barrier")
    k.e("s_cmp_ge_u32 s50, 108"); k.e("s_cbranch_scc1 %s", k.end)
    k.e("v_and_b32 v1, 1, v0"); k.e("v_xor_b32 v2, 1, v1"); k.e("v_mul_u32_u24 v2, 1280, v2"); k.e("v_lshrrev_b32 v3, 5, v0"); k.e("v_lshl_add_u32 v2, v3, 4, v2")
    for kc in range(40):
        k.e("ds_read_b128 %s, v2 offset:%d", vr(8+4*(kc%4)), kc*32)
        k.e("s_waitcnt lgkmcnt(0)")
        k.e("v_mfma_f32_32x32x16_bf16 %s, %s, %s, %s", vr(48,16), vr(64+4*kc), vr(8+4*(kc%4)), vr(48,16) if kc else "0")
    k.e("v_and_b32 v4, 31, v0"); k.e("v_lshlrev_b32 v5, 7, v4"); k.e("v_lshl_add_u32 v5, v3, 4, v5")
    k.e("s_lshl_b32 s51, s50, 8"); k.e("s_add_u32 s51, s51, %d", CSB)
    k.e("v_cmp_gt_u32 vcc, 2, v4"); k.e("s_and_saveexec_b64 s[52:53], vcc")
    for ii in range(4): k.e("buffer_store_dwordx4 %s, v5, s[%d:%d], s51 offen offset:%d", vr(48+4*ii), SW, SW+3, ii*32)
    k.e("s_endpgm")
    k.put(l_mf)
    k.e("s_sub_u32 s40, s50, 124"); k.e("s_lshl_b32 s40, s40, 6"); k.e("v_add_u32 v1, s40, v0"); k.e("v_lshlrev_b32 v2, 4, v1")
    k.e("s_waitcnt vmcnt(0)")
    for i in range(4):
        for p in range(4):
            k.e("s_mov_b32 s41, %d", MODP+p*3840*4+i*4096)
            k.e("buffer_load_dwordx4 %s, v2, s[%d:%d], s41 offen", vr(64+16*i+4*p), SW, SW+3)
    k.e("s_waitcnt vmcnt(0)")
    for i in range(4):
        a = 64+16*i
        k.e("v_add_u32 v3, %d, v1", 256*i)
        k.e("v_subrev_u32 v4, 160, v3"); k.e("v_cmp_gt_u32 vcc, 160, v4"); k.e("v_cndmask_b32 v5, 0, 1.0, vcc")
        k.e("v_subrev_u32 v4, 640, v3"); k.e("v_cmp_gt_u32 vcc, 160, v4"); k.e("v_cndmask_b32 v5, v5, 1.0, vcc")
        for j in range(4):
            k.e("v_add_f32 v%d, v%d, v%d", a+j, a+j, a+4+j); k.e("v_add_f32 v%d, v%d, v%d", a+8+j, a+8+j, a+12+j); k.e("v_add_f32 v%d, v%d, v%d", a+j, a+j, a+8+j)
            bf16_round(k, a+j, a+j); k.e("v_add_f32 v%d, v5, v%d", a+j, a+j); bf16_round(k, a+j, a+j)
        k.e("s_mov_b32 s41, %d", MODF+i*4096)
        k.e("buffer_store_dwordx4 %s, v2, s[%d:%d], s41 offen", vr(a), SW, SW+3)
    k.finish()
    return k


def map42(k, ra, rb_, nlow, t0=40):
    lg = int(math.log2(nlow))
    k.e("s_and_b32 s%d, s2, 7", t0); k.e("s_lshr_b32 s%d, s2, 3", t0+1)
    k.e("s_lshr_b32 s%d, s%d, 1", t0+2, t0); k.e("s_lshl_b32 s%d, s%d, %d", t0+2, t0+2, lg); k.e("s_and_b32 s%d, s%d, %d", t0+3, t0+1, nlow-1); k.e("s_add_u32 s%d, s%d, s%d", ra, t0+2, t0+3)
    k.e("s_and_b32 s%d, s%d, 1", t0+2, t0); k.e("s_lshl_b32 s%d, s%d, %d", t0+2, t0+2, 5-lg); k.e("s_lshr_b32 s%d, s%d, %d", t0+3, t0+1, lg); k.e("s_add_u32 s%d, s%d, s%d", rb_, t0+2, t0+3)

def k_attn():
    BS = 5184
    k = G("attn_kernel", 12*BS)
    k.prologue()
    SW = 28; RB, HG = 60, 61
    k.srd(SW, P_WS, WS_USED)
    map42(k, RB, HG, 4)
    k.e("v_lshlrev_b32 v3, 4, v0")
    k.e("v_lshrrev_b32 v2, 5, v0"); k.e("v_and_b32 v1, 31, v0")
    k.e("v_mul_u32_u24 v4, 38400, v2"); k.e("v_add_u32 v4, v4, v3")
    k.e("s_mul_i32 s44, s%d, 2560", HG); k.e("s_add_u32 s44, s44, %d", QKV+160*256)
    def load_tb(stb):
        k.e("s_lshl_b32 s45, s%d, 2", RB); k.e("s_add_u32 s45, s45, s%d", stb); k.e("s_sub_u32 s45, s45, 8")
        k.e("s_mul_i32 s46, s45, 122880"); k.e("s_add_u32 s46, s46, s44")
        k.e("s_cmp_lt_i32 s45, 0"); k.e("s_cselect_b32 s46, 0x40000000, s46")
        k.e("s_add_u32 s47, s46, 38400")
        k.e("s_mul_i32 s48, s%d, %d", stb, BS)
        k.dma(3, SW, "s46", ldsaddr=(48,0)); k.dma(3, SW, "s46", off=1024); k.dma(4, SW, "s46", off=2048); k.dma(3, SW, "s47", off=3072)
        k.e("s_add_u32 s47, s47, 4096")
        k.dma(3, SW, "s47", ldsaddr=(48,4096))
    load_tb(S_WID)
    l1 = k.label("l1")
    k.e("s_cmp_ge_u32 s%d, 4", S_WID); k.e("s_cbranch_scc1 %s", l1)
    k.e("s_add_u32 s49, s%d, 8", S_WID); load_tb(49)
    k.put(l1)
    QI, HH, HEAD = 50, 51, 52
    k.e("s_and_b32 s%d, s%d, 3", QI, S_WID); k.e("s_lshr_b32 s%d, s%d, 2", HH, S_WID)
    k.e("s_lshl_b32 s%d, s%d, 1", HEAD, HG); k.e("s_add_u32 s%d, s%d, s%d", HEAD, HEAD, HH)
    k.e("s_mul_i32 s53, s%d, 5", HEAD)
    k.e("s_lshl_b32 s54, s%d, 2", RB); k.e("s_add_u32 s54, s54, s%d", QI)
    k.e("s_mul_i32 s55, s54, 122880"); k.e("s_add_u32 s55, s55, %d", QKV)
    KA = 5
    Q0, Q1 = 12, 16
    for z in range(3):
        if z<2: k.e("v_lshl_add_u32 v8, v2, 1, s53");
        if z==1: k.e("v_add_u32 v8, 1, v8")
        if z==2: k.e("s_add_u32 s56, s53, 4"); k.e("v_mov_b32 v8, s56")
        k.e("v_and_b32 v9, 7, v8"); k.e("v_lshlrev_b32 v9, 2, v9"); k.e("v_xor_b32 v9, v9, v1"); k.e("v_lshlrev_b32 v9, 3, v9")
        k.e("v_lshl_add_u32 v%d, v8, 8, v9", KA+z)
        k.e("buffer_load_dwordx2 %s, v%d, s[%d:%d], s55 offen", vr(Q0+2*z,2), KA+z, SW, SW+3)
    l2 = k.label("l2")
    k.e("s_cmp_lg_u32 s%d, 7", S_WID); k.e("s_cbranch_scc1 %s", l2)
    k.e("v_mul_u32_u24 v8, %d, v0", BS); k.e("v_mov_b32 v20, 0x3f803f80"); k.e("v_mov_b32 v21, 0x3f803f80"); k.e("v_mov_b32 v23, 0")
    k.e("s_lshl_b32 s56, s%d, 2", RB); k.e("v_add_u32 v9, s56, v0"); k.e("v_mov_b32 v10, 0xf149")
    k.e("v_cmp_gt_u32 vcc, 8, v9"); k.e("v_cndmask_b32 v22, 0, v10, vcc")
    k.e("v_cmp_gt_u32 vcc, 12, v0"); k.e("s_and_saveexec_b64 s[56:57], vcc")
    k.e("ds_write_b128 v8, v[20:23] offset:5120")
    k.e("s_mov_b64 exec, s[56:57]")
    k.put(l2)
    k.e("s_mul_i32 s56, s%d, %d", QI, BS); k.e("s_mul_i32 s57, s%d, 2560", HG); k.e("s_sub_u32 s57, s56, s57")
    for z in range(3): k.e("v_add_u32 v%d, s57, v%d", KA+z, KA+z)
    k.e("s_add_u32 s58, s56, 5128"); k.e("v_mov_b32 v8, s58")
    k.e("v_cmp_eq_u32 vcc, 1, v2"); k.e("v_cndmask_b32 v%d, v%d, v8, vcc", KA+2, KA+2)
    VA = 8
    k.e("v_bfe_u32 v18, v0, 4, 1"); k.e("v_bfe_u32 v19, v0, 2, 2"); k.e("v_and_b32 v20, 3, v0")
    k.e("v_lshl_add_u32 v21, v18, 2, v20")
    k.e("v_add_u32 v22, s53, v21")
    k.e("v_and_b32 v23, 7, v22"); k.e("v_lshlrev_b32 v23, 2, v23")
    k.e("v_lshl_add_u32 v24, v2, 2, v19")
    k.e("v_xor_b32 v23, v23, v24")
    k.e("v_lshlrev_b32 v22, 8, v22"); k.e("s_add_u32 s58, s57, 2560"); k.e("v_add_u32 v22, s58, v22")
    k.e("s_add_u32 s58, s56, 5120"); k.e("v_mov_b32 v25, s58")
    k.e("v_cmp_lt_u32 vcc, 4, v21")
    for mz in range(4):
        k.e("v_xor_b32 v24, %d, v23", 8*mz); k.e("v_lshl_add_u32 v24, v24, 3, v22")
        k.e("v_cndmask_b32 v%d, v24, v25, vcc", VA+mz)
    MD, MO, NM = 176, 192, 208
    k.e("v_lshlrev_b32 v18, 2, v2"); k.e("v_sub_u32 v18, v1, v18"); k.e("v_mov_b32 v19, 0xff800000")
    for r in range(16):
        k.e("v_cmp_le_i32 vcc, %d, v18", 8*(r//4)+r%4)
        k.e("v_cndmask_b32 v%d, v19, 0, vcc", MD+r); k.e("v_cndmask_b32 v%d, 0, v19, vcc", MO+r)
    k.e("s_waitcnt vmcnt(0) lgkmcnt(0)")
    k.e("v_mov_b32 v18, 0x3f80"); k.e("v_cmp_eq_u32 vcc, 1, v2")
    k.e("v_cndmask_b32 v%d, v%d, v18, vcc", Q1, Q1); k.e("v_cndmask_b32 v%d, v%d, 0, vcc", Q1+1, Q1+1)
    k.e("s_barrier")
    KF = 20
    SB = 80
    PB = 128
    VF = 144
    OA = 160
    MX = 18
    for t in range(9):
        for z in range(3): k.e("ds_read_b64 %s, v%d offset:%d", vr(KF+6*t+2*z,2), KA+z, t*BS)
        if t==4: k.e("s_waitcnt lgkmcnt(3)")
    def smm(t, c):
        s_ = SB+16*(t%3)
        k.e("v_mfma_f32_32x32x16_bf16 %s, %s, %s, %s", vr(s_,16), vr(KF+6*t), vr(Q0), c)
        k.e("v_mfma_f32_32x32x8_bf16 %s, %s, %s, %s", vr(s_,16), vr(KF+6*t+4,2), vr(Q1,2), vr(s_,16))
    def c1(t): return vr(MO,16) if t==0 else (vr(MD,16) if t==8 else "0")
    smm(0, c1(0)); smm(1, c1(1))
    for t in range(9):
        if t==2: k.e("s_waitcnt lgkmcnt(0)")
        if t+2<9: smm(t+2, c1(t+2))
        s_ = SB+16*(t%3)
        for r in range(0,16,2):
            if t==0 and r==0: k.e("v_max_f32 v%d, v%d, v%d", MX, s_, s_+1)
            else: k.e("v_max3_f32 v%d, v%d, v%d, v%d", MX, MX, s_+r, s_+r+1)
    k.e("v_mov_b32 v19, v%d", MX); k.e("v_permlane32_swap_b32 v%d, v19", MX); k.e("v_max_f32 v%d, v%d, v19", MX, MX)
    for r in range(16): k.e("v_sub_f32 v%d, v%d, v%d", MO+r, MO+r, MX)
    for r in range(16): k.e("v_sub_f32 v%d, 0, v%d", NM+r, MX)
    def c2(t): return vr(MO,16) if t==0 else (vr(MD,16) if t==8 else vr(NM,16))
    def vread(t):
        for mz in range(4): k.e("ds_read_b64_tr_b16 %s, v%d offset:%d", vr(VF+8*(t%2)+2*mz,2), VA+mz, t*BS)
    smm(0, c2(0)); smm(1, c2(1)); vread(0)
    for r in range(16): k.e("v_sub_f32 v%d, v%d, v%d", MD+r, MD+r, MX)
    for t in range(9):
        if t+2<9: smm(t+2, c2(t+2))
        if t+1<9: vread(t+1)
        s_ = SB+16*(t%3); p = PB+8*(t%2)
        for m in range(2):
            for r in range(8): k.e("v_exp_f32 v%d, v%d", s_+8*m+r, s_+8*m+r)
            for r in range(4): k.e("v_cvt_pk_bf16_f32 v%d, v%d, v%d", p+4*m+r, s_+8*m+2*r, s_+8*m+2*r+1)
            if m==0: k.e("s_waitcnt lgkmcnt(%d)", 4 if t+1<9 else 0)
            k.e("v_mfma_f32_32x32x16_bf16 %s, %s, %s, %s", vr(OA,16), vr(VF+8*(t%2)+4*m), vr(p+4*m), vr(OA,16) if (t or m) else "0")
    for i in range(3):
        if i<2: k.e("v_add_u32 v20, s53, v2")
        if i==1: k.e("v_add_u32 v20, 2, v20")
        if i==2: k.e("s_add_u32 s56, s53, 4"); k.e("v_mov_b32 v20, s56")
        k.e("v_bfe_u32 v21, v20, 1, 1"); k.e("v_lshlrev_b32 v21, 4, v21"); k.e("v_xor_b32 v21, v21, v1"); k.e("v_lshlrev_b32 v21, 3, v21")
        k.e("v_lshl_add_u32 v%d, v20, 8, v21", 24+i)
    k.e("s_mul_i32 s55, s54, 40960"); k.e("s_add_u32 s55, s55, %d", OATT)
    k.e("v_rcp_f32 v28, v%d", OA+12)
    for r in range(12): k.e("v_mul_f32 v%d, v%d, v28", OA+r, OA+r)
    for i in range(3):
        k.e("v_cvt_pk_bf16_f32 v%d, v%d, v%d", 30+2*i, OA+4*i, OA+4*i+1); k.e("v_cvt_pk_bf16_f32 v%d, v%d, v%d", 31+2*i, OA+4*i+2, OA+4*i+3)
        if i==2: k.e("s_mov_b32 exec_hi, 0")
        k.e("buffer_store_dwordx2 %s, v%d, s[%d:%d], s55 offen", vr(30+2*i,2), 24+i, SW, SW+3)
    k.finish()
    return k


class Q:
    def __init__(self, k, name, mx): self.k=k; self.name=name; self.n=0; self.tags={}; self.done=0; self.mx=mx
    def op(self, line, tag=None):
        self.k.e(line); self.n+=1
        if tag is not None: self.tags[tag]=self.n
        assert self.n-self.done <= self.mx, (self.name, line)
    def cnt(self, tag=None):
        self.n+=1
        if tag is not None: self.tags[tag]=self.n
        assert self.n-self.done <= self.mx, self.name
    def wait(self, tag):
        p = self.tags[tag]
        if p<=self.done: return
        self.k.e("s_waitcnt %s(%d)", self.name, self.n-p); self.done=p
    def waitall(self):
        if self.done<self.n: self.k.e("s_waitcnt %s(0)", self.name); self.done=self.n

def k_proj(down):
    KS = 54 if down else 20
    NST = (KS+3)//4; N = 4
    LA, LB = 0, N*16384
    ABASE, TBS, BBASE = (ACT, 110592, WD_R) if down else (OATT, 40960, WO_R)
    k = G("down_kernel" if down else "wo_kernel", LB+N*20480)
    k.prologue()
    SW, SX = 28, 32; RB, CB = 60, 61
    k.srd(SW, P_WS, WS_USED); k.srd(SX, P_OUT if down else P_X, 2048*1280)
    map42(k, RB, CB, 8)
    l_ld = k.label("loader")
    k.e("s_cmp_ge_u32 s%d, 4", S_WID); k.e("s_cbranch_scc1 %s", l_ld)
    TH, KH = 42, 43
    k.e("s_and_b32 s%d, s%d, 1", TH, S_WID); k.e("s_lshr_b32 s%d, s%d, 1", KH, S_WID)
    k.e("v_and_b32 v1, 15, v0"); k.e("v_lshrrev_b32 v2, 4, v0")
    XR, GP, CP = 160, 176, 200
    k.e("v_mul_u32_u24 v3, 1280, v1"); k.e("v_lshl_add_u32 v3, v2, 3, v3")
    k.e("s_lshl_b32 s44, s%d, 6", RB); k.e("s_lshl_b32 s45, s%d, 5", TH); k.e("s_add_u32 s44, s44, s45"); k.e("s_lshl_b32 s45, s%d, 4", KH); k.e("s_add_u32 s44, s44, s45")
    k.e("s_mul_i32 s46, s44, 1280"); k.e("s_mul_i32 s45, s%d, 160", CB); k.e("s_add_u32 s46, s46, s45")
    k.e("v_lshlrev_b32 v4, 3, v0")
    k.e("s_lshl_b32 s47, s2, 2"); k.e("s_add_u32 s47, s47, s%d", S_WID); k.e("s_mul_i32 s47, s47, 2560"); k.e("s_add_u32 s47, s47, %d", X1P)
    for i in range(5):
        if down: k.e("buffer_load_dwordx2 %s, v4, s[%d:%d], s47 offen offset:%d", vr(XR+2*i,2), SW, SW+3, i*512)
        else: k.e("buffer_load_dwordx2 %s, v3, s[%d:%d], s46 offen offset:%d", vr(XR+2*i,2), SX, SX+3, i*32)
    k.e("v_lshlrev_b32 v5, 4, v2")
    k.e("s_mul_i32 s48, s%d, 320", CB); k.e("s_add_u32 s49, s48, %d", MODF+4*2560); k.e("s_add_u32 s48, s48, %d", MODF+(5 if down else 2)*2560)
    for i in range(5): k.e("buffer_load_dwordx4 %s, v5, s[%d:%d], s48 offen offset:%d", vr(GP+4*i), SW, SW+3, i*64)
    if not down:
        for i in range(5): k.e("buffer_load_dwordx4 %s, v5, s[%d:%d], s49 offen offset:%d", vr(CP+4*i), SW, SW+3, i*64)
    k.e("s_lshl_b32 s50, s%d, 11", TH); k.e("s_lshl_b32 s51, s%d, 12", KH); k.e("s_add_u32 s50, s50, s51")
    for u in range(2):
        k.e("s_xor_b32 s51, s%d, %d", KH, u)
        if down:
            k.e("s_lshl_b32 s51, s51, 8"); k.e("s_add_u32 s51, s51, s50")
            k.e("v_lshlrev_b32 v10, 4, v1"); k.e("v_lshl_add_u32 v10, v2, 9, v10"); k.e("v_add_u32 v%d, s51, v10", 6+u)
        else:
            k.e("v_and_b32 v10, 1, v2"); k.e("v_xor_b32 v10, s51, v10"); k.e("v_lshl_add_u32 v10, v10, 4, v1"); k.e("v_lshlrev_b32 v10, 3, v10")
            k.e("v_lshl_add_u32 v10, v2, 9, v10"); k.e("v_add_u32 v%d, s50, v10", 6+u)
    k.e("s_mul_i32 s51, s%d, 5120", KH); k.e("s_add_u32 s51, s51, %d", LB)
    k.e("v_lshlrev_b32 v8, 4, v0"); k.e("v_add_u32 v8, s51, v8"); k.e("v_add_u32 v9, 0x8000, v8")
    ACC = 16; FR = 64
    def reads(n):
        st = n//2; f = FR+28*(n%2); r = []
        oa = LA+(st%N)*16384+(n%2)*8192
        ob = (st%N)*20480+(n%2)*10240
        breg = 8
        if ob>=0x8000: ob -= 0x8000; breg = 9
        for u in range(2):
            if down: r.append("ds_read_b128 %s, v%d offset:%d"%(vr(f+4*u), 6+u, oa))
            else:
                for jj in range(2): r.append("ds_read_b64 %s, v%d offset:%d"%(vr(f+4*u+2*jj,2), 6+u, oa+jj*256))
        for i in range(5): r.append("ds_read_b128 %s, v%d offset:%d"%(vr(f+8+4*i), breg, ob+i*1024))
        return r
    NS = KS//2
    k.e("s_barrier")
    for l in reads(0): k.e(l)
    for n in range(NS):
        k.e("s_waitcnt lgkmcnt(0)")
        nx = []
        if n+1<NS:
            if (n+1)%2==0: k.e("s_barrier")
            nx = reads(n+1)
        f = FR+28*(n%2); m = 0
        for i in range(5):
            for u in range(2):
                a = ACC+20*u+4*i
                k.e("v_mfma_f32_16x16x32_bf16 %s, %s, %s, %s", vr(a), vr(f+8+4*i), vr(f+4*u), vr(a) if n else "0")
                if m<len(nx): k.e(nx[m])
                m += 1
    SCR = LB+((NST-2)%N)*20480
    k.e("s_mul_i32 s51, s%d, 5120", S_WID); k.e("s_add_u32 s51, s51, %d", SCR); k.e("v_lshlrev_b32 v10, 4, v0"); k.e("v_add_u32 v11, s51, v10")
    k.e("s_xor_b32 s51, s%d, 2", S_WID); k.e("s_mul_i32 s51, s51, 5120"); k.e("s_add_u32 s51, s51, %d", SCR); k.e("v_add_u32 v12, s51, v10")
    for i in range(5): k.e("ds_write_b128 v11, %s offset:%d", vr(ACC+20+4*i), i*1024)
    k.e("s_waitcnt lgkmcnt(0)"); k.e("s_barrier")
    for i in range(5): k.e("ds_read_b128 %s, v12 offset:%d", vr(FR+4*i), i*1024)
    k.e("s_waitcnt vmcnt(0)")
    U = 100
    for i in range(10):
        k.e("v_lshlrev_b32 v%d, 16, v%d", U+2*i, XR+i); k.e("v_and_b32 v%d, 0xffff0000, v%d", U+2*i+1, XR+i)
    k.e("s_waitcnt lgkmcnt(0)")
    for r in range(0,20,2): k.e("v_pk_add_f32 %s, %s, %s", vr(ACC+r,2), vr(ACC+r,2), vr(FR+r,2))
    for r in range(0,20,2): k.e("v_pk_fma_f32 %s, %s, %s, %s", vr(ACC+r,2), vr(ACC+r,2), vr(GP+r,2), vr(U+r,2))
    for r in range(10): k.e("v_cvt_pk_bf16_f32 v%d, v%d, v%d", XR+r, ACC+2*r, ACC+2*r+1)
    if down:
        for i in range(5): k.e("buffer_store_dwordx2 %s, v3, s[%d:%d], s46 offen offset:%d", vr(XR+2*i,2), SX, SX+3, i*32)
    else:
        for i in range(5): k.e("buffer_store_dwordx2 %s, v4, s[%d:%d], s47 offen offset:%d", vr(XR+2*i,2), SW, SW+3, i*512)
        for i in range(10):
            k.e("v_lshlrev_b32 v%d, 16, v%d", U+2*i, XR+i); k.e("v_and_b32 v%d, 0xffff0000, v%d", U+2*i+1, XR+i)
        for r in range(0,20,2): k.e("v_pk_mul_f32 %s, %s, %s", vr(ACC+r,2), vr(U+r,2), vr(CP+r,2))
        for r in range(10): k.e("v_cvt_pk_bf16_f32 v%d, v%d, v%d", FR+r, ACC+2*r, ACC+2*r+1)
        k.e("v_lshrrev_b32 v10, 1, v2"); k.e("v_lshlrev_b32 v10, 9, v10"); k.e("v_lshl_add_u32 v10, v1, 4, v10"); k.e("v_and_b32 v11, 1, v2"); k.e("v_lshl_add_u32 v10, v11, 3, v10")
        k.e("s_lshl_b32 s51, s%d, 1", RB); k.e("s_add_u32 s51, s51, s%d", TH); k.e("s_mul_i32 s51, s51, 40960"); k.e("s_mul_i32 s52, s%d, 5120", CB); k.e("s_add_u32 s51, s51, s52")
        k.e("s_lshl_b32 s52, s%d, 8", KH); k.e("s_add_u32 s51, s51, s52"); k.e("s_add_u32 s51, s51, %d", A2); k.e("s_add_u32 s52, s51, 4096")
        for i in range(5): k.e("buffer_store_dwordx2 %s, v10, s[%d:%d], s%d offen offset:%d", vr(FR+2*i,2), SW, SW+3, 51 if i<4 else 52, (i%4)*1024)
        k.e("v_pk_mul_f32 v[14:15], %s, %s", vr(U,2), vr(U,2)); k.e("v_pk_add_f32 v[12:13], %s, %s", vr(U,2), vr(U+2,2))
        for r in range(2,20,2):
            k.e("v_pk_fma_f32 v[14:15], %s, %s, v[14:15]", vr(U+r,2), vr(U+r,2))
            if r>2: k.e("v_pk_add_f32 v[12:13], v[12:13], %s", vr(U+r,2))
        k.e("v_add_f32 v12, v12, v13"); k.e("v_add_f32 v13, v14, v15")
        k.e("v_permlane16_swap_b32 v12, v13"); k.e("v_add_f32 v12, v12, v13")
        k.e("v_mov_b32 v13, v12"); k.e("v_permlane32_swap_b32 v12, v13"); k.e("v_add_f32 v12, v12, v13")
        k.e("v_lshlrev_b32 v10, 6, v1"); k.e("v_lshl_add_u32 v10, v11, 2, v10")
        k.e("s_lshl_b32 s51, s44, 6"); k.e("s_lshl_b32 s52, s%d, 3", CB); k.e("s_add_u32 s51, s51, s52"); k.e("s_add_u32 s51, s51, %d", STAT)
        k.e("s_mov_b32 exec_hi, 0")
        k.e("buffer_store_dword v12, v10, s[%d:%d], s51 offen", SW, SW+3)
    k.e("s_endpgm")
    k.put(l_ld)
    k.e("s_sub_u32 s42, s%d, 4", S_WID)
    k.e("v_lshlrev_b32 v1, 4, v0")
    k.e("s_mul_i32 s44, s%d, %d", RB, 2*TBS); k.e("s_lshl_b32 s45, s42, 11"); k.e("s_add_u32 s44, s44, s45"); k.e("s_add_u32 s44, s44, %d", ABASE)
    k.e("s_mul_i32 s46, s%d, %d", CB, KS*5120); k.e("s_mul_i32 s45, s42, 5120"); k.e("s_add_u32 s46, s46, s45"); k.e("s_add_u32 s46, s46, %d", BBASE)
    k.e("s_lshl_b32 s48, s42, 12"); k.e("s_add_u32 s49, s45, %d", LB)
    def stage(st):
        if 4*st+4>KS:
            k.e("s_cmp_ge_u32 s42, %d", KS-4*st); k.e("s_cselect_b32 s44, 0x40000000, s44"); k.e("s_cselect_b32 s46, 0x40000000, s46")
        k.e("s_add_u32 s50, s44, %d", st*8192); k.e("s_add_u32 s51, s44, %d", st*8192+TBS-2048)
        k.dma(1, SW, "s50", ldsaddr=(48, LA+(st%N)*16384)); k.dma(1, SW, "s50", off=1024); k.dma(1, SW, "s51", off=2048); k.dma(1, SW, "s51", off=3072)
        k.e("s_add_u32 s50, s46, %d", st*20480); k.e("s_add_u32 s51, s46, %d", st*20480+4096)
        k.dma(1, SW, "s50", ldsaddr=(49, (st%N)*20480))
        for i in range(1,4): k.dma(1, SW, "s50", off=1024*i)
        k.dma(1, SW, "s51", ldsaddr=(49, (st%N)*20480+4096))
    issued = min(N, NST)
    for st in range(issued): stage(st)
    for j in range(NST):
        k.e("s_waitcnt vmcnt(%d)", 9*(issued-j-1)); k.e("s_barrier")
        if j>=1 and j-1+N<NST: stage(j-1+N); issued += 1
    k.finish()
    return k

def k_gu():
    N = 7; NST = 14
    LP = N*20480
    k = G("gu_kernel", LP+2048)
    k.prologue()
    SW = 28; RB, FC, U0 = 60, 61, 62
    k.srd(SW, P_WS, WS_USED)
    map42(k, RB, FC, 4)
    k.e("s_mul_i32 s%d, s%d, 27", U0, FC); k.e("s_lshr_b32 s%d, s%d, 2", U0, U0)
    l_ld = k.label("loader")
    k.e("s_cmp_ge_u32 s%d, 4", S_WID); k.e("s_cbranch_scc1 %s", l_ld)
    AR, ACC, BF, PR, T = 96, 64, 40, 24, 8
    NBF = 6
    vq = Q(k, "vmcnt", 63); lq = Q(k, "lgkmcnt", 15)
    k.e("v_and_b32 v1, 31, v0"); k.e("v_lshrrev_b32 v2, 5, v0"); k.e("v_lshlrev_b32 v3, 4, v0")
    k.e("s_lshl_b32 s44, s%d, 2", RB); k.e("s_add_u32 s44, s44, s%d", S_WID)
    k.e("v_lshlrev_b32 v4, 6, v1"); k.e("v_lshl_add_u32 v4, v2, 5, v4")
    k.e("s_lshl_b32 s45, s44, 11"); k.e("s_add_u32 s45, s45, %d", STAT)
    for i in range(2): vq.op("buffer_load_dwordx4 %s, v4, s[%d:%d], s45 offen offset:%d"%(vr(T+4*i), SW, SW+3, 16*i), "st")
    k.e("s_mul_i32 s45, s44, 40960"); k.e("s_add_u32 s45, s45, %d", A2)
    for kc in range(40):
        if kc%4==0 and kc: k.e("s_add_u32 s45, s45, 4096")
        vq.op("buffer_load_dwordx4 %s, v3, s[%d:%d], s45 offen offset:%d"%(vr(AR+4*kc), SW, SW+3, (kc%4)*1024), ("a",kc))
    k.e("s_mul_i32 s46, s44, 110592"); k.e("s_lshl_b32 s47, s%d, 10", U0); k.e("s_add_u32 s46, s46, s47"); k.e("s_add_u32 s46, s46, %d", ACT)
    vq.wait("st")
    k.e("v_pk_add_f32 v[8:9], v[8:9], v[10:11]"); k.e("v_pk_add_f32 v[12:13], v[12:13], v[14:15]"); k.e("v_pk_add_f32 v[8:9], v[8:9], v[12:13]")
    k.e("v_mov_b32 v10, v8"); k.e("v_mov_b32 v11, v9"); k.e("v_permlane32_swap_b32 v8, v10"); k.e("v_permlane32_swap_b32 v9, v11")
    k.e("v_add_f32 v8, v8, v10"); k.e("v_add_f32 v9, v9, v11")
    k.e("v_mul_f32 v4, 0x%x, v8", f2u(-1/640)); k.e("v_mul_f32 v5, 0x%x, v9", f2u(1/640))
    k.e("v_fma_f32 v5, -v4, v4, v5"); k.e("v_max_f32 v5, 0, v5"); k.e("v_add_f32 v5, 0x%x, v5", f2u(1e-5)); k.e("v_rsq_f32 v5, v5")
    k.e("v_lshlrev_b32 v6, 4, v2"); k.e("v_add_u32 v6, %d, v6", LP)
    k.e("v_add_u32 v7, 0x10000, v3"); k.e("v_add_u32 v1, 0x20000, v3")
    k.e("s_mov_b32 s48, 0x%x", f2u(-math.log2(math.e)))
    def bread(n):
        st = n//20
        if n%20==0: k.e("s_barrier")
        o = (st%N)*20480+(n%20)*1024
        lq.op("ds_read_b128 %s, v%d offset:%d"%(vr(BF+4*(n%NBF)), (3,7,1)[o>>16], o&0xffff), ("b",n))
    def epi(u):
        a = ACC+16*(u%2); ops = []
        for half in range(2):
            def pr(half=half):
                for z in range(4):
                    lq.op("ds_read_b128 %s, v6 offset:%d"%(vr(PR+4*z), u*256+(z>>1)*128+(z&1)*64+half*32), ("p",u,half))
            ops.append(pr); ops += [None]*3
            ops.append(lambda half=half: lq.wait(("p",u,half)))
            L = []
            for j in range(4):
                g_, u_ = a+4*half+j, a+8+4*half+j
                L.append(["v_fma_f32 v%d, v4, v%d, v%d"%(g_, PR+j, g_), "v_fma_f32 v%d, v%d, v5, v%d"%(g_, g_, PR+8+j),
                          "v_fma_f32 v%d, v4, v%d, v%d"%(u_, PR+4+j, u_), "v_mul_f32 v%d, s48, v%d"%(T+j, g_), "v_fma_f32 v%d, v%d, v5, v%d"%(u_, u_, PR+12+j),
                          "v_exp_f32 v%d, v%d"%(T+j, T+j), "v_mul_f32 v%d, v%d, v%d"%(g_, g_, u_), "v_add_f32 v%d, 1.0, v%d"%(T+j, T+j),
                          "v_rcp_f32 v%d, v%d"%(T+j, T+j), "v_mul_f32 v%d, v%d, v%d"%(g_, g_, T+j)])
            for s_ in range(10):
                for j in range(4): ops.append(lambda l=L[j][s_]: k.e(l))
            for j in range(2): ops.append(lambda j=j, half=half: k.e("v_cvt_pk_bf16_f32 v%d, v%d, v%d", T+8+4*(u%2)+2*half+j, a+4*half+2*j, a+4*half+2*j+1))
        def st():
            if u==4: k.e("s_add_u32 s46, s46, 4096")
            vq.op("buffer_store_dwordx4 %s, v3, s[%d:%d], s46 offen offset:%d"%(vr(T+8+4*(u%2)), SW, SW+3, (u%4)*1024))
        ops.append(st)
        return ops
    D = NBF-1
    for n in range(D): bread(n)
    pend = []
    for n in range(280):
        u, kc = n//40, n%40
        if kc==1 and u>0: pend = epi(u-1)
        if u==0: vq.wait(("a",kc))
        lq.wait(("b",n))
        a = ACC+16*(u%2)
        k.e("v_mfma_f32_32x32x16_bf16 %s, %s, %s, %s", vr(a,16), vr(BF+4*(n%NBF)), vr(AR+4*kc), vr(a,16) if kc else "0")
        if n+D<280: bread(n+D)
        for _ in range(3):
            if pend:
                o = pend.pop(0)
                if o: o()
        if kc==39: assert not pend
    for o in epi(6):
        if o: o()
    k.e("s_endpgm")
    k.put(l_ld)
    k.e("s_sub_u32 s42, s%d, 4", S_WID)
    k.e("v_lshlrev_b32 v1, 4, v0")
    k.e("s_lshl_b32 s44, s%d, 8", U0); k.e("s_add_u32 s44, s44, %d", CSB)
    k.dma(1, SW, "s44", ldsaddr=LP); k.dma(1, SW, "s44", off=1024)
    k.e("s_mul_i32 s45, s42, 5120"); k.e("s_mul_i32 s46, s%d, 40960", U0); k.e("s_add_u32 s46, s46, s45"); k.e("s_add_u32 s46, s46, %d", WGU_R)
    def stage(st):
        k.e("s_add_u32 s50, s46, %d", st*20480); k.e("s_add_u32 s51, s46, %d", st*20480+4096)
        k.dma(1, SW, "s50", ldsaddr=(45, (st%N)*20480))
        for i in range(1,4): k.dma(1, SW, "s50", off=1024*i)
        k.dma(1, SW, "s51", ldsaddr=(45, (st%N)*20480+4096))
    issued = N
    for st in range(N): stage(st)
    for j in range(NST):
        k.e("s_waitcnt vmcnt(%d)", 5*(issued-j-1)); k.e("s_barrier")
        if j>=2 and j-2+N<NST: stage(j-2+N); issued += 1
    k.finish()
    return k

if __name__=="__main__":
    ks = [k_prep(), k_qkv(), k_attn(), k_proj(False), k_gu(), k_proj(True)]
    write_file(sys.argv[1] if len(sys.argv)>1 else "out.s", ks)
```

```python
import sys, math
from asmgen import *
import hazard

MODP = 0x0
CSB  = 0x10000
MODF = 0x18000
STAT = 0x20000
WO_R = 0x100000
WD_R = 0x200000
WGU_R= 0x500000
QKV  = 0xA00000
OATT = 0x1200000
A2   = 0x1500000
X1P  = 0x1800000
ACT  = 0x1B00000
WS_USED = 0x2200000

P_X,P_WQKV,P_WO,P_BX,P_WG,P_WU,P_WD,P_C,P_WMOD,P_OUT,P_DBG,P_WS = 4,6,8,10,12,14,16,18,20,22,24,26
S_WID = 3
QSCALE = math.log2(math.e)/math.sqrt(20.0)
import struct
def f2u(x): return struct.unpack("<I", struct.pack("<f", x))[0]

class G(K):
    def __init__(self, name, lds, grid=256):
        super().__init__(name, grid, 512, lds, vgpr=256, sgpr=102)
        self.end = self.label("end")
    def prologue(self, nwg=256):
        self.e("s_cmp_ge_u32 s2, %d", nwg); self.e("s_cbranch_scc1 %s", self.end)
        self.e("s_load_dwordx16 s[4:19], s[0:1], 0"); self.e("s_load_dwordx8 s[20:27], s[0:1], 64")
        self.e("v_lshrrev_b32 v1, 6, v0"); self.e("v_and_b32 v0, 63, v0"); self.e("v_readfirstlane_b32 s%d, v1", S_WID)
        self.e("s_waitcnt lgkmcnt(0)")
    def srd(self, s, p, n): srd(self, s, p, n)
    def finish(self):
        self.put(self.end); self.e("s_endpgm")
        self.lines, n = hazard.fix(self.lines)
    def divmod_s(self, q, r, x, d, tmp):
        self.e("s_mul_hi_u32 s%d, s%d, 0x%x", q, x, (1<<32)//d+1)
        self.e("s_mul_i32 s%d, s%d, %d", tmp, q, d); self.e("s_sub_u32 s%d, s%d, s%d", r, x, tmp)
    def dma(self, voff, srd_, soff, ldsaddr_s=None, ldsaddr=None, off=0, flags=""):
        if ldsaddr is not None:
            if isinstance(ldsaddr, tuple): self.e("s_add_u32 m0, s%d, %d", ldsaddr[0], ldsaddr[1])
            else: self.e("s_mov_b32 m0, %d", ldsaddr)
        self.e("buffer_load_dwordx4 v%d, s[%d:%d], %s offen%s %s lds", voff, srd_, srd_+3, soff, (" offset:%d"%off) if off else "", flags)

def vr(a, n=4): return "v[%d:%d]"%(a, a+n-1)

def k_prep():
    k = G("prep_kernel", 8192*4+2048)
    k.prologue()
    SW=28; S1=32; S2=36
    k.srd(SW, P_WS, WS_USED)
    rep = k.label("rep")
    k.e("s_cmp_ge_u32 s%d, 4", S_WID); k.e("s_cbranch_scc1 %s", rep)
    k.e("s_cmp_ge_u32 s2, 240"); k.e("s_cbranch_scc1 %s", k.end)
    k.srd(S1, P_WMOD, 640*7680); k.srd(S2, P_C, 1280)
    k.divmod_s(40, 41, 2, 60, 42)
    k.e("s_mul_i32 s42, s40, 160"); k.e("s_mul_i32 s43, s%d, 40", S_WID); k.e("s_add_u32 s42, s42, s43")
    k.e("v_lshrrev_b32 v1, 3, v0"); k.e("v_and_b32 v2, 7, v0")
    k.e("v_add_u32 v1, s42, v1")
    k.e("v_lshlrev_b32 v3, 1, v1")
    k.e("v_mul_u32_u24 v4, 7680, v1"); k.e("v_lshl_add_u32 v4, v2, 4, v4")
    k.e("s_lshl_b32 s44, s41, 7")
    for i in range(5): k.e("buffer_load_ushort v%d, v3, s[%d:%d], 0 offen offset:%d", 8+i, S2, S2+3, i*16)
    for i in range(5):
        k.e("buffer_load_dwordx4 %s, v4, s[%d:%d], s44 offen nt", vr(16+4*i), S1, S1+3)
        if i<4: k.e("s_add_u32 s44, s44, %d", 8*7680)
    k.e("s_waitcnt vmcnt(5)")
    for i in range(5):
        k.e("v_lshlrev_b32 v%d, 16, v%d", 8+i, 8+i)
        k.e("v_mul_f32 v5, 0x%x, v%d", f2u(-math.log2(math.e)), 8+i)
        k.e("v_exp_f32 v5, v5"); k.e("v_add_f32 v5, 1.0, v5"); k.e("v_rcp_f32 v5, v5")
        k.e("v_mul_f32 v5, v5, v%d", 8+i)
        k.e("v_cvt_pk_bf16_f32 v5, v5, v5"); k.e("v_lshlrev_b32 v%d, 16, v5", 8+i)
    A=40
    for i in range(5):
        k.e("s_waitcnt vmcnt(%d)", 4-i)
        for j in range(4):
            k.e("v_lshlrev_b32 v5, 16, v%d", 16+4*i+j); k.e("v_and_b32 v6, 0xffff0000, v%d", 16+4*i+j)
            if i==0:
                k.e("v_mul_f32 v%d, v5, v%d", A+2*j, 8+i); k.e("v_mul_f32 v%d, v6, v%d", A+2*j+1, 8+i)
            else:
                k.e("v_fmac_f32 v%d, v5, v%d", A+2*j, 8+i); k.e("v_fmac_f32 v%d, v6, v%d", A+2*j+1, 8+i)
    for j in range(4): k.e("v_permlane32_swap_b32 v%d, v%d", A+j, A+j+4)
    for j in range(4): k.e("v_add_f32 v%d, v%d, v%d", A+j, A+j, A+j+4)
    for j in range(2): k.e("v_permlane16_swap_b32 v%d, v%d", A+j, A+j+2)
    for j in range(2): k.e("v_add_f32 v%d, v%d, v%d", A+j, A+j, A+j+2)
    for j in range(2): k.e("v_add_f32_dpp v%d, v%d, v%d row_ror:8 row_mask:0xf bank_mask:0xf", A+j, A+j, A+j)
    k.e("v_lshrrev_b32 v5, 4, v0"); k.e("v_lshlrev_b32 v5, 3, v5"); k.e("v_lshl_add_u32 v5, v2, 5, v5")
    k.e("s_lshl_b32 s45, s%d, 8", S_WID); k.e("v_add_u32 v5, s45, v5")
    k.e("ds_write_b64 v5, v[%d:%d] offset:32768", A, A+1)
    k.e("s_waitcnt lgkmcnt(0)"); k.e("s_barrier")
    k.e("s_cmp_lg_u32 s%d, 0", S_WID); k.e("s_cbranch_scc1 %s", k.end)
    k.e("v_lshlrev_b32 v5, 2, v0")
    for j in range(4): k.e("ds_read_b32 v%d, v5 offset:%d", 8+j, 32768+256*j)
    k.e("s_waitcnt lgkmcnt(0)")
    k.e("v_add_f32 v8, v8, v9"); k.e("v_add_f32 v10, v10, v11"); k.e("v_add_f32 v8, v8, v10")
    k.e("s_mul_i32 s42, s40, %d", 3840*4); k.e("s_lshl_b32 s43, s41, 8"); k.e("s_add_u32 s42, s42, s43")
    if MODP: k.e("s_add_u32 s42, s42, %d", MODP)
    k.e("buffer_store_dword v8, v5, s[%d:%d], s42 offen", SW, SW+3)
    k.e("s_endpgm")
    k.put(rep)
    repack(k, SW, S1, S2, 0)
    k.finish()
    return k

def repack(k, SW, S1, S2, ldsbase):
    k.e("s_lshl_b32 s40, s2, 2"); k.e("s_add_u32 s40, s40, s%d", S_WID); k.e("s_sub_u32 s40, s40, 4")
    k.e("s_sub_u32 s41, s%d, 4", S_WID); k.e("s_lshl_b32 s41, s41, 13")
    if ldsbase: k.e("s_add_u32 s41, s41, %d", ldsbase)
    k.e("v_lshrrev_b32 v1, 3, v0"); k.e("v_and_b32 v2, 7, v0")
    k.e("v_mul_u32_u24 v3, 3456, v1"); k.e("v_lshl_add_u32 v3, v2, 4, v3")
    k.e("v_mul_u32_u24 v4, 1280, v1"); k.e("v_lshl_add_u32 v4, v2, 4, v4")
    k.e("v_lshrrev_b32 v5, 4, v0"); k.e("v_bfe_u32 v6, v0, 2, 2"); k.e("v_and_b32 v7, 3, v0")
    k.e("v_lshlrev_b32 v7, 3, v7"); k.e("v_lshl_add_u32 v7, v6, 7, v7"); k.e("v_add_u32 v7, s41, v7")
    k.e("v_and_b32 v8, 1, v5"); k.e("v_lshrrev_b32 v9, 1, v5")
    k.e("v_lshl_add_u32 v10, v5, 10, v7")
    k.e("v_lshl_add_u32 v11, v9, 11, v7"); k.e("v_lshl_add_u32 v11, v8, 9, v11")
    k.e("v_lshl_add_u32 v12, v8, 11, v7"); k.e("v_lshl_add_u32 v12, v9, 10, v12")
    k.e("v_lshlrev_b32 v13, 4, v0")
    k.srd(S1, P_WG, 640*3456); k.srd(S2, P_WU, 640*3456)
    def gu_load(q, lo):
        k.divmod_s(44, 45, q, 27, 46)
        k.e("s_mul_i32 s46, s44, %d", 16*3456); k.e("s_lshl_b32 s47, s45, 7"); k.e("s_add_u32 s46, s46, s47")
        k.e("s_add_u32 s47, s46, %d", 8*3456)
        k.dma(3, S1, "s46", ldsaddr=(41, lo), flags="nt"); k.dma(3, S1, "s47", ldsaddr=(41, lo+1024), flags="nt")
        k.dma(3, S2, "s46", ldsaddr=(41, lo+2048), flags="nt"); k.dma(3, S2, "s47", ldsaddr=(41, lo+3072), flags="nt")
    def gu_dst(d):
        k.e("s_mul_i32 s46, s45, %d", 4*40*1024); k.e("s_lshl_b32 s47, s44, 10"); k.e("s_add_u32 s46, s46, s47")
        for f in range(4): k.e("s_add_u32 s%d, s46, %d", d+f, WGU_R+f*40*1024)
    def out(areg, second, lo, d, rb):
        for f in range(4):
            k.e("ds_read_b64_tr_b16 v[%d:%d], v%d offset:%d", rb+4*f, rb+4*f+1, areg, lo+f*32)
            k.e("ds_read_b64_tr_b16 v[%d:%d], v%d offset:%d", rb+4*f+2, rb+4*f+3, areg, lo+f*32+second*128)
        for f in range(4):
            k.e("s_waitcnt lgkmcnt(%d)", 6-2*f)
            k.e("buffer_store_dwordx4 %s, v13, s[%d:%d], s%d offen", vr(rb+4*f), SW, SW+3, d+f)
    gu_load(40, 0); gu_dst(48)
    k.e("s_add_u32 s40, s40, 1024")
    l_dn = k.label("dn"); l_wo = k.label("wo"); l_no = k.label("no")
    k.e("s_cmp_ge_u32 s40, 1820"); k.e("s_cbranch_scc1 %s", l_no)
    k.e("s_cmp_ge_u32 s40, 1620"); k.e("s_cbranch_scc1 %s", l_wo)
    k.e("s_cmp_ge_u32 s40, 1080"); k.e("s_cbranch_scc1 %s", l_dn)
    gu_load(40, 4096); gu_dst(52)
    k.e("s_barrier")
    k.e("s_waitcnt vmcnt(4)"); out(12, 4, 0, 48, 16)
    k.e("s_waitcnt vmcnt(4)"); out(12, 4, 4096, 52, 32)
    k.e("s_endpgm")
    def wd_block(ptr, nrows, q0, base, areg, second):
        KS = nrows//32
        k.srd(S1, ptr, nrows*1280)
        k.e("s_sub_u32 s40, s40, %d", q0)
        k.divmod_s(44, 45, 40, 10, 46)
        k.e("s_mul_i32 s46, s44, %d", 32*1280); k.e("s_lshl_b32 s47, s45, 7"); k.e("s_add_u32 s46, s46, s47")
        for i in range(4):
            k.dma(4, S1, "s46", ldsaddr=(41, 4096+i*1024), flags="nt")
            if i<3: k.e("s_add_u32 s46, s46, %d", 8*1280)
        for f in range(4):
            k.e("s_lshl_b32 s46, s45, 2"); k.e("s_add_u32 s46, s46, %d", f)
            k.divmod_s(47, 56, 46, 5, 57)
            k.e("s_mul_i32 s47, s47, %d", KS); k.e("s_add_u32 s47, s47, s44"); k.e("s_mul_i32 s47, s47, 5"); k.e("s_add_u32 s47, s47, s56")
            k.e("s_lshl_b32 s47, s47, 10"); k.e("s_add_u32 s%d, s47, %d", 52+f, base)
        k.e("s_barrier")
        k.e("s_waitcnt vmcnt(4)"); out(12, 4, 0, 48, 16)
        k.e("s_waitcnt vmcnt(4)"); out(areg, second, 4096, 52, 32)
        k.e("s_endpgm")
    k.put(l_dn); wd_block(P_WD, 1728, 1080, WD_R, 11, 8)
    k.put(l_wo); wd_block(P_WO, 640, 1620, WO_R, 10, 4)
    k.put(l_no)
    k.e("s_barrier")
    k.e("s_waitcnt vmcnt(0)"); out(12, 4, 0, 48, 16)


def bf16_round(k, d, s_):
    k.e("v_cvt_pk_bf16_f32 v%d, v%d, v%d", d, s_, s_); k.e("v_lshlrev_b32 v%d, 16, v%d", d, d)

def mod_finalize(k, SW, first, one_from, ldsaddr, as_bf16=False, swap_rows=False, nvals=1280, tb=8, flags=""):
    n = nvals//256
    k.e("s_lshl_b32 s40, s%d, 6", S_WID); k.e("v_add_u32 v1, s40, v0"); k.e("v_lshlrev_b32 v2, 2, v1")
    for p in range(4):
        k.e("s_mov_b32 s41, %d", MODP + (p*3840+first)*4)
        for i in range(n):
            if i==4: k.e("s_add_u32 s41, s41, 4096")
            k.e("buffer_load_dword v%d, v2, s[%d:%d], s41 offen offset:%d %s", tb+p*n+i, SW, SW+3, (i%4)*1024, flags)
    k.e("s_waitcnt vmcnt(0)")
    for i in range(n):
        a = tb+i
        k.e("v_add_f32 v%d, v%d, v%d", a, a, a+n); k.e("v_add_f32 v%d, v%d, v%d", a+2*n, a+2*n, a+3*n); k.e("v_add_f32 v%d, v%d, v%d", a, a, a+2*n)
        bf16_round(k, a, a)
        lo, hi = 256*i, 256*i+255
        if lo >= one_from: k.e("v_add_f32 v%d, 1.0, v%d", a, a)
        elif hi >= one_from:
            k.e("v_cmp_le_u32 vcc, %d, v1", one_from-lo); k.e("v_cndmask_b32 v3, 0, 1.0, vcc"); k.e("v_add_f32 v%d, v3, v%d", a, a)
        if as_bf16:
            k.e("v_cvt_pk_bf16_f32 v%d, v%d, v%d", a, a, a)
            k.e("v_lshlrev_b32 v3, 1, v1")
            k.e("ds_write_b16 v3, v%d offset:%d", a, ldsaddr+512*i)
        else:
            if hi >= one_from: bf16_round(k, a, a)
            k.e("v_add_u32 v3, %d, v2", ldsaddr+1024*i)
            k.e("ds_write_b32 v3, v%d", a)

def k_qkv():
    NB, NA = 6, 3
    LB, LA = 0, NB*16384
    LP = LA + NA*16384
    k = G("qkv_kernel", LP+5120)
    k.prologue()
    SW, SX, SQ = 28, 32, 36
    RB, CB = 60, 61
    k.srd(SW, P_WS, WS_USED); k.srd(SX, P_X, 2048*1280); k.srd(SQ, P_WQKV, 640*3840)
    k.e("s_and_b32 s40, s2, 7"); k.e("s_lshr_b32 s41, s2, 3")
    k.e("s_lshr_b32 s42, s40, 1"); k.e("s_lshl_b32 s42, s42, 2"); k.e("s_and_b32 s43, s41, 3"); k.e("s_add_u32 s%d, s42, s43", RB)
    k.e("s_and_b32 s42, s40, 1"); k.e("s_lshl_b32 s42, s42, 3"); k.e("s_lshr_b32 s43, s41, 2"); k.e("s_add_u32 s%d, s42, s43", CB)
    l_cs = k.label("csb"); l_ld = k.label("loader")
    k.e("s_cmp_ge_u32 s%d, 15", CB); k.e("s_cbranch_scc1 %s", l_cs)
    k.e("s_cmp_ge_u32 s%d, 4", S_WID); k.e("s_cbranch_scc1 %s", l_ld)
    mod_finalize(k, SW, 0, 640, LP)
    k.e("s_waitcnt lgkmcnt(0)"); k.e("s_barrier")
    k.e("s_and_b32 s42, s%d, 1", S_WID); k.e("s_lshr_b32 s43, s%d, 1", S_WID)
    k.e("v_and_b32 v1, 31, v0"); k.e("v_lshrrev_b32 v2, 5, v0")
    AA = 4
    k.e("s_lshl_b32 s44, s42, 13"); k.e("s_add_u32 s44, s44, %d", LA)
    for q in range(4):
        k.e("v_add_u32 v3, %d, v2", 2*q); k.e("v_xor_b32 v%d, v1, v3", AA+q); k.e("v_lshlrev_b32 v%d, 4, v%d", AA+q, AA+q)
        k.e("v_lshl_add_u32 v%d, v3, 9, v%d", AA+q, AA+q); k.e("v_add_u32 v%d, s44, v%d", AA+q, AA+q)
    BA = 8
    k.e("v_bfe_u32 v12, v0, 2, 2"); k.e("v_bfe_u32 v13, v0, 4, 1"); k.e("v_and_b32 v14, 3, v0")
    for i in range(2):
        k.e("s_lshl_b32 s45, s43, 1"); k.e("s_add_u32 s45, s45, %d", i)
        k.e("v_xor_b32 v3, s45, v12"); k.e("v_lshlrev_b32 v3, 6, v3")
        k.e("v_lshl_add_u32 v3, v13, 5, v3"); k.e("v_lshl_add_u32 v3, v14, 3, v3")
        k.e("v_lshl_add_u32 v3, v12, 8, v3"); k.e("v_lshl_add_u32 v%d, v2, 11, v3", BA+i)
        k.e("v_add_u32 v%d, 0x10000, v%d", BA+2+i, BA+i)
    ACC = 64; FR = 16
    def reads(kc):
        s = kc//4; q = kc%4; f = FR+16*(kc%3)
        r = []
        for j in range(2): r.append("ds_read_b128 %s, v%d offset:%d"%(vr(f+4*j), AA+q, (s%NA)*16384+j*4096))
        o = LB+(s%NB)*16384+q*4096
        hi = 2 if o>=65536 else 0
        for i in range(2):
            for z in range(2): r.append("ds_read_b64_tr_b16 %s, v%d offset:%d"%(vr(f+8+4*i+2*z,2), BA+hi+i, o%65536+z*1024))
        return r
    k.e("s_barrier")
    for l in reads(0)+reads(1): k.e(l)
    for kc in range(40):
        nx = []
        if kc+2<40:
            if (kc+2)%4==0: k.e("s_barrier")
            nx = reads(kc+2)
        k.e("s_waitcnt lgkmcnt(%d)", 6 if kc<39 else 0)
        f = FR+16*(kc%3)
        m = 0
        for i in range(2):
            for j in range(2):
                a = ACC+16*(2*i+j)
                k.e("v_mfma_f32_32x32x16_bf16 %s, %s, %s, %s", vr(a,16), vr(f+8+4*i), vr(f+4*j), vr(a,16) if kc else "0")
                for l in nx[2*m:2*m+2]: k.e(l)
                m += 1
    k.e("s_mov_b32 s46, 1.0"); k.e("s_cmp_lt_u32 s%d, 5", CB); k.e("s_cselect_b32 s46, 0x%x, s46", f2u(QSCALE)); k.e("s_mov_b32 s47, s46")
    for ii in range(4):
        k.e("v_add_u32 v3, %d, v2", 2*ii); k.e("v_lshlrev_b32 v12, 2, v3"); k.e("v_xor_b32 v12, v12, v1"); k.e("v_lshlrev_b32 v12, 3, v12")
        k.e("v_lshl_add_u32 v%d, v3, 8, v12", 4+ii)
    k.e("s_lshl_b32 s48, s%d, 2", RB); k.e("s_lshl_b32 s49, s42, 1"); k.e("s_add_u32 s48, s48, s49"); k.e("s_mul_i32 s48, s48, 122880")
    k.e("s_lshl_b32 s49, s%d, 13", CB); k.e("s_add_u32 s48, s48, s49"); k.e("s_lshl_b32 s49, s43, 12"); k.e("s_add_u32 s48, s48, s49")
    k.e("s_add_u32 s48, s48, %d", QKV); k.e("s_add_u32 s49, s48, 122880")
    n = 0
    for i in range(2):
        for j in range(2):
            a = ACC+16*(2*i+j)
            for ii in range(4):
                b = a+4*ii; d = 16+2*(n%8); n += 1
                k.e("v_pk_mul_f32 %s, %s, s[46:47]", vr(b,2), vr(b,2)); k.e("v_pk_mul_f32 %s, %s, s[46:47]", vr(b+2,2), vr(b+2,2))
                k.e("v_cvt_pk_bf16_f32 v%d, v%d, v%d", d, b, b+1); k.e("v_cvt_pk_bf16_f32 v%d, v%d, v%d", d+1, b+2, b+3)
                k.e("buffer_store_dwordx2 %s, v%d, s[%d:%d], s%d offen offset:%d", vr(d,2), 4+ii, SW, SW+3, 48+j, i*2048)
    k.e("s_endpgm")
    k.put(l_ld)
    X = 64; ST = 224; PR = 16; T = 48
    k.e("s_sub_u32 s42, s%d, 4", S_WID)
    k.e("v_lshrrev_b32 v1, 3, v0"); k.e("v_and_b32 v2, 7, v0")
    k.e("v_mul_u32_u24 v3, 1280, v1"); k.e("v_lshl_add_u32 v3, v2, 4, v3")
    k.e("s_lshl_b32 s43, s%d, 7", RB); k.e("s_lshl_b32 s44, s42, 5"); k.e("s_add_u32 s43, s43, s44"); k.e("s_mul_i32 s43, s43, 1280")
    for rg in range(4): k.e("s_add_u32 s%d, s43, %d", 48+rg, rg*8*1280)
    for s_ in range(10):
        for rg in range(4):
            k.e("buffer_load_dwordx4 %s, v3, s[%d:%d], s%d offen offset:%d", vr(X+16*s_+4*rg), SX, SX+3, 48+rg, s_*128)
    k.e("v_lshrrev_b32 v4, 4, v0"); k.e("v_and_b32 v5, 15, v0"); k.e("v_lshlrev_b32 v6, 2, v4"); k.e("v_xor_b32 v5, v5, v6")
    k.e("v_mul_u32_u24 v4, 3840, v4"); k.e("v_lshl_add_u32 v4, v5, 4, v4")
    k.e("s_mul_i32 s52, s42, %d", 16*3840); k.e("s_lshl_b32 s53, s%d, 8", CB); k.e("s_add_u32 s52, s52, s53")
    k.e("s_lshl_b32 s53, s42, 12")
    def wstage(s_):
        for i in range(4):
            k.e("s_add_u32 s54, s52, %d", (s_*64+i*4)*3840)
            k.dma(4, SQ, "s54", ldsaddr=(53, LB+(s_%NB)*16384+i*1024))
    for s_ in range(5): wstage(s_)
    k.e("s_mov_b32 s55, 0x3f803f80")
    for rg in range(8): k.e("v_mov_b32 v%d, 0", ST+rg)
    for s_ in range(10):
        k.e("s_waitcnt vmcnt(%d)", 60-4*(s_+1))
        for j in range(4):
            for rg in range(4):
                x = X+16*s_+4*rg+j
                k.e("v_dot2c_f32_bf16 v%d, s55, v%d", ST+2*rg, x); k.e("v_dot2c_f32_bf16 v%d, v%d, v%d", ST+2*rg+1, x, x)
    wstage(5)
    for mod_ in ("quad_perm:[1,0,3,2]", "quad_perm:[2,3,0,1]", "row_half_mirror"):
        for r in range(8): k.e("v_add_f32_dpp v%d, v%d, v%d %s row_mask:0xf bank_mask:0xf", ST+r, ST+r, ST+r, mod_)
    for rg in range(4):
        a, b = ST+2*rg, ST+2*rg+1
        k.e("v_mul_f32 v%d, 0x%x, v%d", a, f2u(1/640), a); k.e("v_mul_f32 v%d, 0x%x, v%d", b, f2u(1/640), b)
        k.e("v_fma_f32 v%d, -v%d, v%d, v%d", b, a, a, b); k.e("v_max_f32 v%d, 0, v%d", b, b); k.e("v_add_f32 v%d, 0x%x, v%d", b, f2u(1e-5), b)
        k.e("v_rsq_f32 v%d, v%d", b, b); k.e("v_mul_f32 v%d, v%d, v%d", a, a, b); k.e("v_sub_f32 v%d, 0, v%d", a, a)
    k.e("v_xor_b32 v5, v1, v2"); k.e("v_lshlrev_b32 v5, 4, v5"); k.e("v_lshl_add_u32 v5, v2, 9, v5")
    k.e("s_add_u32 s54, s53, %d", LA); k.e("v_add_u32 v5, s54, v5")
    k.e("v_lshlrev_b32 v6, 5, v2"); k.e("v_add_u32 v6, %d, v6", LP)
    k.e("s_barrier")
    def pread(s_):
        p = PR+16*(s_%2)
        k.e("ds_read_b128 %s, v6 offset:%d", vr(p), 2560+s_*256); k.e("ds_read_b128 %s, v6 offset:%d", vr(p+4), 2560+s_*256+16)
        k.e("ds_read_b128 %s, v6 offset:%d", vr(p+8), s_*256); k.e("ds_read_b128 %s, v6 offset:%d", vr(p+12), s_*256+16)
    pread(0)
    issued = 6
    for j_ in range(10):
        k.e("s_waitcnt lgkmcnt(0)")
        if j_+1<10: pread(j_+1)
        p = PR+16*(j_%2)
        for rg in range(4):
            x = X+16*j_+4*rg; t = T+8*(rg%2)
            for j in range(4):
                k.e("v_lshlrev_b32 v%d, 16, v%d", t+2*j, x+j); k.e("v_and_b32 v%d, 0xffff0000, v%d", t+2*j+1, x+j)
            for j in range(8): k.e("v_fma_f32 v%d, v%d, v%d, v%d", t+j, t+j, ST+2*rg+1, ST+2*rg)
            for j in range(8): k.e("v_fma_f32 v%d, v%d, v%d, v%d", t+j, t+j, p+j, p+8+j)
            for j in range(4): k.e("v_cvt_pk_bf16_f32 v%d, v%d, v%d", x+j, t+2*j, t+2*j+1)
            k.e("ds_write_b128 v5, %s offset:%d", vr(x), (j_%NA)*16384+rg*128)
        k.e("s_waitcnt vmcnt(%d) lgkmcnt(0)", 4*(issued-j_-1))
        k.e("s_barrier")
        nxt = j_-2+NB
        if j_>=2 and nxt<10: wstage(nxt); issued += 1
    k.e("s_endpgm")
    k.put(l_cs)
    l_sk = k.label("sk")
    k.e("s_lshl_b32 s50, s%d, 3", RB); k.e("s_add_u32 s50, s50, s%d", S_WID)
    k.e("s_mul_i32 s51, s50, %d", 40*1024); k.e("s_add_u32 s51, s51, %d", WGU_R)
    k.e("v_lshlrev_b32 v40, 4, v0")
    for kc in range(40):
        if kc%4==0 and kc: k.e("s_add_u32 s51, s51, 4096")
        k.e("buffer_load_dwordx4 %s, v40, s[%d:%d], s51 offen offset:%d", vr(64+4*kc), SW, SW+3, (kc%4)*1024)
    l_mf = k.label("mf")
    k.e("s_cmp_ge_u32 s50, 124"); k.e("s_cbranch_scc1 %s", l_mf)
    k.e("s_cmp_ge_u32 s%d, 4", S_WID); k.e("s_cbranch_scc1 %s", l_sk)
    mod_finalize(k, SW, 1920, 640, 0, as_bf16=True)
    k.put(l_sk)
    k.e("s_waitcnt vmcnt(0) lgkmcnt(0)"); k.e("s_barrier")
    k.e("s_cmp_ge_u32 s50, 108"); k.e("s_cbranch_scc1 %s", k.end)
    k.e("v_and_b32 v1, 1, v0"); k.e("v_xor_b32 v2, 1, v1"); k.e("v_mul_u32_u24 v2, 1280, v2"); k.e("v_lshrrev_b32 v3, 5, v0"); k.e("v_lshl_add_u32 v2, v3, 4, v2")
    for kc in range(40):
        k.e("ds_read_b128 %s, v2 offset:%d", vr(8+4*(kc%4)), kc*32)
        k.e("s_waitcnt lgkmcnt(0)")
        k.e("v_mfma_f32_32x32x16_bf16 %s, %s, %s, %s", vr(48,16), vr(64+4*kc), vr(8+4*(kc%4)), vr(48,16) if kc else "0")
    k.e("v_and_b32 v4, 31, v0"); k.e("v_lshlrev_b32 v5, 7, v4"); k.e("v_lshl_add_u32 v5, v3, 4, v5")
    k.e("s_lshl_b32 s51, s50, 8"); k.e("s_add_u32 s51, s51, %d", CSB)
    k.e("v_cmp_gt_u32 vcc, 2, v4"); k.e("s_and_saveexec_b64 s[52:53], vcc")
    for ii in range(4): k.e("buffer_store_dwordx4 %s, v5, s[%d:%d], s51 offen offset:%d", vr(48+4*ii), SW, SW+3, ii*32)
    k.e("s_endpgm")
    k.put(l_mf)
    k.e("s_sub_u32 s40, s50, 124"); k.e("s_lshl_b32 s40, s40, 6"); k.e("v_add_u32 v1, s40, v0"); k.e("v_lshlrev_b32 v2, 4, v1")
    k.e("s_waitcnt vmcnt(0)")
    for i in range(4):
        for p in range(4):
            k.e("s_mov_b32 s41, %d", MODP+p*3840*4+i*4096)
            k.e("buffer_load_dwordx4 %s, v2, s[%d:%d], s41 offen", vr(64+16*i+4*p), SW, SW+3)
    k.e("s_waitcnt vmcnt(0)")
    for i in range(4):
        a = 64+16*i
        k.e("v_add_u32 v3, %d, v1", 256*i)
        k.e("v_subrev_u32 v4, 160, v3"); k.e("v_cmp_gt_u32 vcc, 160, v4"); k.e("v_cndmask_b32 v5, 0, 1.0, vcc")
        k.e("v_subrev_u32 v4, 640, v3"); k.e("v_cmp_gt_u32 vcc, 160, v4"); k.e("v_cndmask_b32 v5, v5, 1.0, vcc")
        for j in range(4):
            k.e("v_add_f32 v%d, v%d, v%d", a+j, a+j, a+4+j); k.e("v_add_f32 v%d, v%d, v%d", a+8+j, a+8+j, a+12+j); k.e("v_add_f32 v%d, v%d, v%d", a+j, a+j, a+8+j)
            bf16_round(k, a+j, a+j); k.e("v_add_f32 v%d, v5, v%d", a+j, a+j); bf16_round(k, a+j, a+j)
        k.e("s_mov_b32 s41, %d", MODF+i*4096)
        k.e("buffer_store_dwordx4 %s, v2, s[%d:%d], s41 offen", vr(a), SW, SW+3)
    k.finish()
    return k


def map42(k, ra, rb_, nlow, t0=40):
    lg = int(math.log2(nlow))
    k.e("s_and_b32 s%d, s2, 7", t0); k.e("s_lshr_b32 s%d, s2, 3", t0+1)
    k.e("s_lshr_b32 s%d, s%d, 1", t0+2, t0); k.e("s_lshl_b32 s%d, s%d, %d", t0+2, t0+2, lg); k.e("s_and_b32 s%d, s%d, %d", t0+3, t0+1, nlow-1); k.e("s_add_u32 s%d, s%d, s%d", ra, t0+2, t0+3)
    k.e("s_and_b32 s%d, s%d, 1", t0+2, t0); k.e("s_lshl_b32 s%d, s%d, %d", t0+2, t0+2, 5-lg); k.e("s_lshr_b32 s%d, s%d, %d", t0+3, t0+1, lg); k.e("s_add_u32 s%d, s%d, s%d", rb_, t0+2, t0+3)

def k_attn():
    BS = 5184
    k = G("attn_kernel", 12*BS)
    k.prologue()
    SW = 28; RB, HG = 60, 61
    k.srd(SW, P_WS, WS_USED)
    map42(k, RB, HG, 4)
    k.e("v_lshlrev_b32 v3, 4, v0")
    k.e("v_lshrrev_b32 v2, 5, v0"); k.e("v_and_b32 v1, 31, v0")
    k.e("v_mul_u32_u24 v4, 38400, v2"); k.e("v_add_u32 v4, v4, v3")
    k.e("s_mul_i32 s44, s%d, 2560", HG); k.e("s_add_u32 s44, s44, %d", QKV+160*256)
    def load_tb(stb):
        k.e("s_lshl_b32 s45, s%d, 2", RB); k.e("s_add_u32 s45, s45, s%d", stb); k.e("s_sub_u32 s45, s45, 8")
        k.e("s_mul_i32 s46, s45, 122880"); k.e("s_add_u32 s46, s46, s44")
        k.e("s_cmp_lt_i32 s45, 0"); k.e("s_cselect_b32 s46, 0x40000000, s46")
        k.e("s_add_u32 s47, s46, 38400")
        k.e("s_mul_i32 s48, s%d, %d", stb, BS)
        k.dma(3, SW, "s46", ldsaddr=(48,0)); k.dma(3, SW, "s46", off=1024); k.dma(4, SW, "s46", off=2048); k.dma(3, SW, "s47", off=3072)
        k.e("s_add_u32 s47, s47, 4096")
        k.dma(3, SW, "s47", ldsaddr=(48,4096))
    load_tb(S_WID)
    l1 = k.label("l1")
    k.e("s_cmp_ge_u32 s%d, 4", S_WID); k.e("s_cbranch_scc1 %s", l1)
    k.e("s_add_u32 s49, s%d, 8", S_WID); load_tb(49)
    k.put(l1)
    QI, HH, HEAD = 50, 51, 52
    k.e("s_and_b32 s%d, s%d, 3", QI, S_WID); k.e("s_lshr_b32 s%d, s%d, 2", HH, S_WID)
    k.e("s_lshl_b32 s%d, s%d, 1", HEAD, HG); k.e("s_add_u32 s%d, s%d, s%d", HEAD, HEAD, HH)
    k.e("s_mul_i32 s53, s%d, 5", HEAD)
    k.e("s_lshl_b32 s54, s%d, 2", RB); k.e("s_add_u32 s54, s54, s%d", QI)
    k.e("s_mul_i32 s55, s54, 122880"); k.e("s_add_u32 s55, s55, %d", QKV)
    KA = 5
    Q0, Q1 = 12, 16
    for z in range(3):
        if z<2: k.e("v_lshl_add_u32 v8, v2, 1, s53");
        if z==1: k.e("v_add_u32 v8, 1, v8")
        if z==2: k.e("s_add_u32 s56, s53, 4"); k.e("v_mov_b32 v8, s56")
        k.e("v_and_b32 v9, 7, v8"); k.e("v_lshlrev_b32 v9, 2, v9"); k.e("v_xor_b32 v9, v9, v1"); k.e("v_lshlrev_b32 v9, 3, v9")
        k.e("v_lshl_add_u32 v%d, v8, 8, v9", KA+z)
        k.e("buffer_load_dwordx2 %s, v%d, s[%d:%d], s55 offen", vr(Q0+2*z,2), KA+z, SW, SW+3)
    l2 = k.label("l2")
    k.e("s_cmp_lg_u32 s%d, 7", S_WID); k.e("s_cbranch_scc1 %s", l2)
    k.e("v_mul_u32_u24 v8, %d, v0", BS); k.e("v_mov_b32 v20, 0x3f803f80"); k.e("v_mov_b32 v21, 0x3f803f80"); k.e("v_mov_b32 v23, 0")
    k.e("s_lshl_b32 s56, s%d, 2", RB); k.e("v_add_u32 v9, s56, v0"); k.e("v_mov_b32 v10, 0xf149")
    k.e("v_cmp_gt_u32 vcc, 8, v9"); k.e("v_cndmask_b32 v22, 0, v10, vcc")
    k.e("v_cmp_gt_u32 vcc, 12, v0"); k.e("s_and_saveexec_b64 s[56:57], vcc")
    k.e("ds_write_b128 v8, v[20:23] offset:5120")
    k.e("s_mov_b64 exec, s[56:57]")
    k.put(l2)
    k.e("s_mul_i32 s56, s%d, %d", QI, BS); k.e("s_mul_i32 s57, s%d, 2560", HG); k.e("s_sub_u32 s57, s56, s57")
    for z in range(3): k.e("v_add_u32 v%d, s57, v%d", KA+z, KA+z)
    k.e("s_add_u32 s58, s56, 5128"); k.e("v_mov_b32 v8, s58")
    k.e("v_cmp_eq_u32 vcc, 1, v2"); k.e("v_cndmask_b32 v%d, v%d, v8, vcc", KA+2, KA+2)
    VA = 8
    k.e("v_bfe_u32 v18, v0, 4, 1"); k.e("v_bfe_u32 v19, v0, 2, 2"); k.e("v_and_b32 v20, 3, v0")
    k.e("v_lshl_add_u32 v21, v18, 2, v20")
    k.e("v_add_u32 v22, s53, v21")
    k.e("v_and_b32 v23, 7, v22"); k.e("v_lshlrev_b32 v23, 2, v23")
    k.e("v_lshl_add_u32 v24, v2, 2, v19")
    k.e("v_xor_b32 v23, v23, v24")
    k.e("v_lshlrev_b32 v22, 8, v22"); k.e("s_add_u32 s58, s57, 2560"); k.e("v_add_u32 v22, s58, v22")
    k.e("s_add_u32 s58, s56, 5120"); k.e("v_mov_b32 v25, s58")
    k.e("v_cmp_lt_u32 vcc, 4, v21")
    for mz in range(4):
        k.e("v_xor_b32 v24, %d, v23", 8*mz); k.e("v_lshl_add_u32 v24, v24, 3, v22")
        k.e("v_cndmask_b32 v%d, v24, v25, vcc", VA+mz)
    MD, MO, NM = 176, 192, 208
    k.e("v_lshlrev_b32 v18, 2, v2"); k.e("v_sub_u32 v18, v1, v18"); k.e("v_mov_b32 v19, 0xff800000")
    for r in range(16):
        k.e("v_cmp_le_i32 vcc, %d, v18", 8*(r//4)+r%4)
        k.e("v_cndmask_b32 v%d, v19, 0, vcc", MD+r); k.e("v_cndmask_b32 v%d, 0, v19, vcc", MO+r)
    k.e("s_waitcnt vmcnt(0) lgkmcnt(0)")
    k.e("v_mov_b32 v18, 0x3f80"); k.e("v_cmp_eq_u32 vcc, 1, v2")
    k.e("v_cndmask_b32 v%d, v%d, v18, vcc", Q1, Q1); k.e("v_cndmask_b32 v%d, v%d, 0, vcc", Q1+1, Q1+1)
    k.e("s_barrier")
    KF = 20
    SB = 80
    PB = 128
    VF = 144
    OA = 160
    MX = 18
    for t in range(9):
        for z in range(3): k.e("ds_read_b64 %s, v%d offset:%d", vr(KF+6*t+2*z,2), KA+z, t*BS)
        if t==4: k.e("s_waitcnt lgkmcnt(3)")
    def smm(t, c):
        s_ = SB+16*(t%3)
        k.e("v_mfma_f32_32x32x16_bf16 %s, %s, %s, %s", vr(s_,16), vr(KF+6*t), vr(Q0), c)
        k.e("v_mfma_f32_32x32x8_bf16 %s, %s, %s, %s", vr(s_,16), vr(KF+6*t+4,2), vr(Q1,2), vr(s_,16))
    def c1(t): return vr(MO,16) if t==0 else (vr(MD,16) if t==8 else "0")
    smm(0, c1(0)); smm(1, c1(1))
    for t in range(9):
        if t==2: k.e("s_waitcnt lgkmcnt(0)")
        if t+2<9: smm(t+2, c1(t+2))
        s_ = SB+16*(t%3)
        for r in range(0,16,2):
            if t==0 and r==0: k.e("v_max_f32 v%d, v%d, v%d", MX, s_, s_+1)
            else: k.e("v_max3_f32 v%d, v%d, v%d, v%d", MX, MX, s_+r, s_+r+1)
    k.e("v_mov_b32 v19, v%d", MX); k.e("v_permlane32_swap_b32 v%d, v19", MX); k.e("v_max_f32 v%d, v%d, v19", MX, MX)
    for r in range(16): k.e("v_sub_f32 v%d, v%d, v%d", MO+r, MO+r, MX)
    for r in range(16): k.e("v_sub_f32 v%d, 0, v%d", NM+r, MX)
    def c2(t): return vr(MO,16) if t==0 else (vr(MD,16) if t==8 else vr(NM,16))
    def vread(t):
        for mz in range(4): k.e("ds_read_b64_tr_b16 %s, v%d offset:%d", vr(VF+8*(t%2)+2*mz,2), VA+mz, t*BS)
    smm(0, c2(0)); smm(1, c2(1)); vread(0)
    for r in range(16): k.e("v_sub_f32 v%d, v%d, v%d", MD+r, MD+r, MX)
    for t in range(9):
        if t+2<9: smm(t+2, c2(t+2))
        if t+1<9: vread(t+1)
        s_ = SB+16*(t%3); p = PB+8*(t%2)
        for m in range(2):
            for r in range(8): k.e("v_exp_f32 v%d, v%d", s_+8*m+r, s_+8*m+r)
            for r in range(4): k.e("v_cvt_pk_bf16_f32 v%d, v%d, v%d", p+4*m+r, s_+8*m+2*r, s_+8*m+2*r+1)
            if m==0: k.e("s_waitcnt lgkmcnt(%d)", 4 if t+1<9 else 0)
            k.e("v_mfma_f32_32x32x16_bf16 %s, %s, %s, %s", vr(OA,16), vr(VF+8*(t%2)+4*m), vr(p+4*m), vr(OA,16) if (t or m) else "0")
    for i in range(3):
        if i<2: k.e("v_add_u32 v20, s53, v2")
        if i==1: k.e("v_add_u32 v20, 2, v20")
        if i==2: k.e("s_add_u32 s56, s53, 4"); k.e("v_mov_b32 v20, s56")
        k.e("v_bfe_u32 v21, v20, 1, 1"); k.e("v_lshlrev_b32 v21, 4, v21"); k.e("v_xor_b32 v21, v21, v1"); k.e("v_lshlrev_b32 v21, 3, v21")
        k.e("v_lshl_add_u32 v%d, v20, 8, v21", 24+i)
    k.e("s_mul_i32 s55, s54, 40960"); k.e("s_add_u32 s55, s55, %d", OATT)
    k.e("v_rcp_f32 v28, v%d", OA+12)
    for r in range(12): k.e("v_mul_f32 v%d, v%d, v28", OA+r, OA+r)
    for i in range(3):
        k.e("v_cvt_pk_bf16_f32 v%d, v%d, v%d", 30+2*i, OA+4*i, OA+4*i+1); k.e("v_cvt_pk_bf16_f32 v%d, v%d, v%d", 31+2*i, OA+4*i+2, OA+4*i+3)
        if i==2: k.e("s_mov_b32 exec_hi, 0")
        k.e("buffer_store_dwordx2 %s, v%d, s[%d:%d], s55 offen", vr(30+2*i,2), 24+i, SW, SW+3)
    k.finish()
    return k


class Q:
    def __init__(self, k, name, mx): self.k=k; self.name=name; self.n=0; self.tags={}; self.done=0; self.mx=mx
    def op(self, line, tag=None):
        self.k.e(line); self.n+=1
        if tag is not None: self.tags[tag]=self.n
        assert self.n-self.done <= self.mx, (self.name, line)
    def cnt(self, tag=None):
        self.n+=1
        if tag is not None: self.tags[tag]=self.n
        assert self.n-self.done <= self.mx, self.name
    def wait(self, tag):
        p = self.tags[tag]
        if p<=self.done: return
        self.k.e("s_waitcnt %s(%d)", self.name, self.n-p); self.done=p
    def waitall(self):
        if self.done<self.n: self.k.e("s_waitcnt %s(0)", self.name); self.done=self.n

def k_proj(down):
    KS = 54 if down else 20
    NST = (KS+3)//4; N = 4
    LA, LB = 0, N*16384
    ABASE, TBS, BBASE = (ACT, 110592, WD_R) if down else (OATT, 40960, WO_R)
    k = G("down_kernel" if down else "wo_kernel", LB+N*20480)
    k.prologue()
    SW, SX = 28, 32; RB, CB = 60, 61
    k.srd(SW, P_WS, WS_USED); k.srd(SX, P_OUT if down else P_X, 2048*1280)
    map42(k, RB, CB, 8)
    l_ld = k.label("loader")
    k.e("s_cmp_ge_u32 s%d, 4", S_WID); k.e("s_cbranch_scc1 %s", l_ld)
    TH, KH = 42, 43
    k.e("s_and_b32 s%d, s%d, 1", TH, S_WID); k.e("s_lshr_b32 s%d, s%d, 1", KH, S_WID)
    k.e("v_and_b32 v1, 15, v0"); k.e("v_lshrrev_b32 v2, 4, v0")
    XR, GP, CP = 160, 176, 200
    k.e("v_mul_u32_u24 v3, 1280, v1"); k.e("v_lshl_add_u32 v3, v2, 3, v3")
    k.e("s_lshl_b32 s44, s%d, 6", RB); k.e("s_lshl_b32 s45, s%d, 5", TH); k.e("s_add_u32 s44, s44, s45"); k.e("s_lshl_b32 s45, s%d, 4", KH); k.e("s_add_u32 s44, s44, s45")
    k.e("s_mul_i32 s46, s44, 1280"); k.e("s_mul_i32 s45, s%d, 160", CB); k.e("s_add_u32 s46, s46, s45")
    k.e("v_lshlrev_b32 v4, 3, v0")
    k.e("s_lshl_b32 s47, s2, 2"); k.e("s_add_u32 s47, s47, s%d", S_WID); k.e("s_mul_i32 s47, s47, 2560"); k.e("s_add_u32 s47, s47, %d", X1P)
    for i in range(5):
        if down: k.e("buffer_load_dwordx2 %s, v4, s[%d:%d], s47 offen offset:%d", vr(XR+2*i,2), SW, SW+3, i*512)
        else: k.e("buffer_load_dwordx2 %s, v3, s[%d:%d], s46 offen offset:%d", vr(XR+2*i,2), SX, SX+3, i*32)
    k.e("v_lshlrev_b32 v5, 4, v2")
    k.e("s_mul_i32 s48, s%d, 320", CB); k.e("s_add_u32 s49, s48, %d", MODF+4*2560); k.e("s_add_u32 s48, s48, %d", MODF+(5 if down else 2)*2560)
    for i in range(5): k.e("buffer_load_dwordx4 %s, v5, s[%d:%d], s48 offen offset:%d", vr(GP+4*i), SW, SW+3, i*64)
    if not down:
        for i in range(5): k.e("buffer_load_dwordx4 %s, v5, s[%d:%d], s49 offen offset:%d", vr(CP+4*i), SW, SW+3, i*64)
    k.e("s_lshl_b32 s50, s%d, 11", TH); k.e("s_lshl_b32 s51, s%d, 12", KH); k.e("s_add_u32 s50, s50, s51")
    for u in range(2):
        k.e("s_xor_b32 s51, s%d, %d", KH, u)
        if down:
            k.e("s_lshl_b32 s51, s51, 8"); k.e("s_add_u32 s51, s51, s50")
            k.e("v_lshlrev_b32 v10, 4, v1"); k.e("v_lshl_add_u32 v10, v2, 9, v10"); k.e("v_add_u32 v%d, s51, v10", 6+u)
        else:
            k.e("v_and_b32 v10, 1, v2"); k.e("v_xor_b32 v10, s51, v10"); k.e("v_lshl_add_u32 v10, v10, 4, v1"); k.e("v_lshlrev_b32 v10, 3, v10")
            k.e("v_lshl_add_u32 v10, v2, 9, v10"); k.e("v_add_u32 v%d, s50, v10", 6+u)
    k.e("s_mul_i32 s51, s%d, 5120", KH); k.e("s_add_u32 s51, s51, %d", LB)
    k.e("v_lshlrev_b32 v8, 4, v0"); k.e("v_add_u32 v8, s51, v8"); k.e("v_add_u32 v9, 0x8000, v8")
    ACC = 16; FR = 64
    def reads(n):
        st = n//2; f = FR+28*(n%2); r = []
        oa = LA+(st%N)*16384+(n%2)*8192
        ob = (st%N)*20480+(n%2)*10240
        breg = 8
        if ob>=0x8000: ob -= 0x8000; breg = 9
        for u in range(2):
            if down: r.append("ds_read_b128 %s, v%d offset:%d"%(vr(f+4*u), 6+u, oa))
            else:
                for jj in range(2): r.append("ds_read_b64 %s, v%d offset:%d"%(vr(f+4*u+2*jj,2), 6+u, oa+jj*256))
        for i in range(5): r.append("ds_read_b128 %s, v%d offset:%d"%(vr(f+8+4*i), breg, ob+i*1024))
        return r
    NS = KS//2
    k.e("s_barrier")
    for l in reads(0): k.e(l)
    for n in range(NS):
        k.e("s_waitcnt lgkmcnt(0)")
        nx = []
        if n+1<NS:
            if (n+1)%2==0: k.e("s_barrier")
            nx = reads(n+1)
        f = FR+28*(n%2); m = 0
        for i in range(5):
            for u in range(2):
                a = ACC+20*u+4*i
                k.e("v_mfma_f32_16x16x32_bf16 %s, %s, %s, %s", vr(a), vr(f+8+4*i), vr(f+4*u), vr(a) if n else "0")
                if m<len(nx): k.e(nx[m])
                m += 1
    SCR = LB+((NST-2)%N)*20480
    k.e("s_mul_i32 s51, s%d, 5120", S_WID); k.e("s_add_u32 s51, s51, %d", SCR); k.e("v_lshlrev_b32 v10, 4, v0"); k.e("v_add_u32 v11, s51, v10")
    k.e("s_xor_b32 s51, s%d, 2", S_WID); k.e("s_mul_i32 s51, s51, 5120"); k.e("s_add_u32 s51, s51, %d", SCR); k.e("v_add_u32 v12, s51, v10")
    for i in range(5): k.e("ds_write_b128 v11, %s offset:%d", vr(ACC+20+4*i), i*1024)
    k.e("s_waitcnt lgkmcnt(0)"); k.e("s_barrier")
    for i in range(5): k.e("ds_read_b128 %s, v12 offset:%d", vr(FR+4*i), i*1024)
    k.e("s_waitcnt vmcnt(0)")
    U = 100
    for i in range(10):
        k.e("v_lshlrev_b32 v%d, 16, v%d", U+2*i, XR+i); k.e("v_and_b32 v%d, 0xffff0000, v%d", U+2*i+1, XR+i)
    k.e("s_waitcnt lgkmcnt(0)")
    for r in range(0,20,2): k.e("v_pk_add_f32 %s, %s, %s", vr(ACC+r,2), vr(ACC+r,2), vr(FR+r,2))
    for r in range(0,20,2): k.e("v_pk_fma_f32 %s, %s, %s, %s", vr(ACC+r,2), vr(ACC+r,2), vr(GP+r,2), vr(U+r,2))
    for r in range(10): k.e("v_cvt_pk_bf16_f32 v%d, v%d, v%d", XR+r, ACC+2*r, ACC+2*r+1)
    if down:
        for i in range(5): k.e("buffer_store_dwordx2 %s, v3, s[%d:%d], s46 offen offset:%d", vr(XR+2*i,2), SX, SX+3, i*32)
    else:
        for i in range(5): k.e("buffer_store_dwordx2 %s, v4, s[%d:%d], s47 offen offset:%d", vr(XR+2*i,2), SW, SW+3, i*512)
        for i in range(10):
            k.e("v_lshlrev_b32 v%d, 16, v%d", U+2*i, XR+i); k.e("v_and_b32 v%d, 0xffff0000, v%d", U+2*i+1, XR+i)
        for r in range(0,20,2): k.e("v_pk_mul_f32 %s, %s, %s", vr(ACC+r,2), vr(U+r,2), vr(CP+r,2))
        for r in range(10): k.e("v_cvt_pk_bf16_f32 v%d, v%d, v%d", FR+r, ACC+2*r, ACC+2*r+1)
        k.e("v_lshrrev_b32 v10, 1, v2"); k.e("v_lshlrev_b32 v10, 9, v10"); k.e("v_lshl_add_u32 v10, v1, 4, v10"); k.e("v_and_b32 v11, 1, v2"); k.e("v_lshl_add_u32 v10, v11, 3, v10")
        k.e("s_lshl_b32 s51, s%d, 1", RB); k.e("s_add_u32 s51, s51, s%d", TH); k.e("s_mul_i32 s51, s51, 40960"); k.e("s_mul_i32 s52, s%d, 5120", CB); k.e("s_add_u32 s51, s51, s52")
        k.e("s_lshl_b32 s52, s%d, 8", KH); k.e("s_add_u32 s51, s51, s52"); k.e("s_add_u32 s51, s51, %d", A2); k.e("s_add_u32 s52, s51, 4096")
        for i in range(5): k.e("buffer_store_dwordx2 %s, v10, s[%d:%d], s%d offen offset:%d", vr(FR+2*i,2), SW, SW+3, 51 if i<4 else 52, (i%4)*1024)
        k.e("v_pk_mul_f32 v[14:15], %s, %s", vr(U,2), vr(U,2)); k.e("v_pk_add_f32 v[12:13], %s, %s", vr(U,2), vr(U+2,2))
        for r in range(2,20,2):
            k.e("v_pk_fma_f32 v[14:15], %s, %s, v[14:15]", vr(U+r,2), vr(U+r,2))
            if r>2: k.e("v_pk_add_f32 v[12:13], v[12:13], %s", vr(U+r,2))
        k.e("v_add_f32 v12, v12, v13"); k.e("v_add_f32 v13, v14, v15")
        k.e("v_permlane16_swap_b32 v12, v13"); k.e("v_add_f32 v12, v12, v13")
        k.e("v_mov_b32 v13, v12"); k.e("v_permlane32_swap_b32 v12, v13"); k.e("v_add_f32 v12, v12, v13")
        k.e("v_lshlrev_b32 v10, 6, v1"); k.e("v_lshl_add_u32 v10, v11, 2, v10")
        k.e("s_lshl_b32 s51, s44, 6"); k.e("s_lshl_b32 s52, s%d, 3", CB); k.e("s_add_u32 s51, s51, s52"); k.e("s_add_u32 s51, s51, %d", STAT)
        k.e("s_mov_b32 exec_hi, 0")
        k.e("buffer_store_dword v12, v10, s[%d:%d], s51 offen", SW, SW+3)
    k.e("s_endpgm")
    k.put(l_ld)
    k.e("s_sub_u32 s42, s%d, 4", S_WID)
    k.e("v_lshlrev_b32 v1, 4, v0")
    k.e("s_mul_i32 s44, s%d, %d", RB, 2*TBS); k.e("s_lshl_b32 s45, s42, 11"); k.e("s_add_u32 s44, s44, s45"); k.e("s_add_u32 s44, s44, %d", ABASE)
    k.e("s_mul_i32 s46, s%d, %d", CB, KS*5120); k.e("s_mul_i32 s45, s42, 5120"); k.e("s_add_u32 s46, s46, s45"); k.e("s_add_u32 s46, s46, %d", BBASE)
    k.e("s_lshl_b32 s48, s42, 12"); k.e("s_add_u32 s49, s45, %d", LB)
    def stage(st):
        if 4*st+4>KS:
            k.e("s_cmp_ge_u32 s42, %d", KS-4*st); k.e("s_cselect_b32 s44, 0x40000000, s44"); k.e("s_cselect_b32 s46, 0x40000000, s46")
        k.e("s_add_u32 s50, s44, %d", st*8192); k.e("s_add_u32 s51, s44, %d", st*8192+TBS-2048)
        k.dma(1, SW, "s50", ldsaddr=(48, LA+(st%N)*16384)); k.dma(1, SW, "s50", off=1024); k.dma(1, SW, "s51", off=2048); k.dma(1, SW, "s51", off=3072)
        k.e("s_add_u32 s50, s46, %d", st*20480); k.e("s_add_u32 s51, s46, %d", st*20480+4096)
        k.dma(1, SW, "s50", ldsaddr=(49, (st%N)*20480))
        for i in range(1,4): k.dma(1, SW, "s50", off=1024*i)
        k.dma(1, SW, "s51", ldsaddr=(49, (st%N)*20480+4096))
    issued = min(N, NST)
    for st in range(issued): stage(st)
    for j in range(NST):
        k.e("s_waitcnt vmcnt(%d)", 9*(issued-j-1)); k.e("s_barrier")
        if j>=1 and j-1+N<NST: stage(j-1+N); issued += 1
    k.finish()
    return k

def k_gu():
    N = 7; NST = 14
    LP = N*20480
    k = G("gu_kernel", LP+2048)
    k.prologue()
    SW = 28; RB, FC, U0 = 60, 61, 62
    k.srd(SW, P_WS, WS_USED)
    map42(k, RB, FC, 4)
    k.e("s_mul_i32 s%d, s%d, 27", U0, FC); k.e("s_lshr_b32 s%d, s%d, 2", U0, U0)
    l_ld = k.label("loader")
    k.e("s_cmp_ge_u32 s%d, 4", S_WID); k.e("s_cbranch_scc1 %s", l_ld)
    AR, ACC, BF, PR, T = 96, 64, 40, 24, 8
    NBF = 6
    vq = Q(k, "vmcnt", 63); lq = Q(k, "lgkmcnt", 15)
    k.e("v_and_b32 v1, 31, v0"); k.e("v_lshrrev_b32 v2, 5, v0"); k.e("v_lshlrev_b32 v3, 4, v0")
    k.e("s_lshl_b32 s44, s%d, 2", RB); k.e("s_add_u32 s44, s44, s%d", S_WID)
    k.e("v_lshlrev_b32 v4, 6, v1"); k.e("v_lshl_add_u32 v4, v2, 5, v4")
    k.e("s_lshl_b32 s45, s44, 11"); k.e("s_add_u32 s45, s45, %d", STAT)
    for i in range(2): vq.op("buffer_load_dwordx4 %s, v4, s[%d:%d], s45 offen offset:%d"%(vr(T+4*i), SW, SW+3, 16*i), "st")
    k.e("s_mul_i32 s45, s44, 40960"); k.e("s_add_u32 s45, s45, %d", A2)
    for kc in range(40):
        if kc%4==0 and kc: k.e("s_add_u32 s45, s45, 4096")
        vq.op("buffer_load_dwordx4 %s, v3, s[%d:%d], s45 offen offset:%d"%(vr(AR+4*kc), SW, SW+3, (kc%4)*1024), ("a",kc))
    k.e("s_mul_i32 s46, s44, 110592"); k.e("s_lshl_b32 s47, s%d, 10", U0); k.e("s_add_u32 s46, s46, s47"); k.e("s_add_u32 s46, s46, %d", ACT)
    vq.wait("st")
    k.e("v_pk_add_f32 v[8:9], v[8:9], v[10:11]"); k.e("v_pk_add_f32 v[12:13], v[12:13], v[14:15]"); k.e("v_pk_add_f32 v[8:9], v[8:9], v[12:13]")
    k.e("v_mov_b32 v10, v8"); k.e("v_mov_b32 v11, v9"); k.e("v_permlane32_swap_b32 v8, v10"); k.e("v_permlane32_swap_b32 v9, v11")
    k.e("v_add_f32 v8, v8, v10"); k.e("v_add_f32 v9, v9, v11")
    k.e("v_mul_f32 v4, 0x%x, v8", f2u(-1/640)); k.e("v_mul_f32 v5, 0x%x, v9", f2u(1/640))
    k.e("v_fma_f32 v5, -v4, v4, v5"); k.e("v_max_f32 v5, 0, v5"); k.e("v_add_f32 v5, 0x%x, v5", f2u(1e-5)); k.e("v_rsq_f32 v5, v5")
    k.e("v_lshlrev_b32 v6, 4, v2"); k.e("v_add_u32 v6, %d, v6", LP)
    k.e("v_add_u32 v7, 0x10000, v3"); k.e("v_add_u32 v1, 0x20000, v3")
    k.e("s_mov_b32 s48, 0x%x", f2u(-math.log2(math.e)))
    def bread(n):
        st = n//20
        if n%20==0: k.e("s_barrier")
        o = (st%N)*20480+(n%20)*1024
        lq.op("ds_read_b128 %s, v%d offset:%d"%(vr(BF+4*(n%NBF)), (3,7,1)[o>>16], o&0xffff), ("b",n))
    def epi(u):
        a = ACC+16*(u%2); ops = []
        for half in range(2):
            def pr(half=half):
                for z in range(4):
                    lq.op("ds_read_b128 %s, v6 offset:%d"%(vr(PR+4*z), u*256+(z>>1)*128+(z&1)*64+half*32), ("p",u,half))
            ops.append(pr); ops += [None]*3
            ops.append(lambda half=half: lq.wait(("p",u,half)))
            L = []
            for j in range(4):
                g_, u_ = a+4*half+j, a+8+4*half+j
                L.append(["v_fma_f32 v%d, v4, v%d, v%d"%(g_, PR+j, g_), "v_fma_f32 v%d, v%d, v5, v%d"%(g_, g_, PR+8+j),
                          "v_fma_f32 v%d, v4, v%d, v%d"%(u_, PR+4+j, u_), "v_mul_f32 v%d, s48, v%d"%(T+j, g_), "v_fma_f32 v%d, v%d, v5, v%d"%(u_, u_, PR+12+j),
                          "v_exp_f32 v%d, v%d"%(T+j, T+j), "v_mul_f32 v%d, v%d, v%d"%(g_, g_, u_), "v_add_f32 v%d, 1.0, v%d"%(T+j, T+j),
                          "v_rcp_f32 v%d, v%d"%(T+j, T+j), "v_mul_f32 v%d, v%d, v%d"%(g_, g_, T+j)])
            for s_ in range(10):
                for j in range(4): ops.append(lambda l=L[j][s_]: k.e(l))
            for j in range(2): ops.append(lambda j=j, half=half: k.e("v_cvt_pk_bf16_f32 v%d, v%d, v%d", T+8+4*(u%2)+2*half+j, a+4*half+2*j, a+4*half+2*j+1))
        def st():
            if u==4: k.e("s_add_u32 s46, s46, 4096")
            vq.op("buffer_store_dwordx4 %s, v3, s[%d:%d], s46 offen offset:%d"%(vr(T+8+4*(u%2)), SW, SW+3, (u%4)*1024))
        ops.append(st)
        return ops
    D = NBF-1
    for n in range(D): bread(n)
    pend = []
    for n in range(280):
        u, kc = n//40, n%40
        if kc==1 and u>0: pend = epi(u-1)
        if u==0: vq.wait(("a",kc))
        lq.wait(("b",n))
        a = ACC+16*(u%2)
        k.e("v_mfma_f32_32x32x16_bf16 %s, %s, %s, %s", vr(a,16), vr(BF+4*(n%NBF)), vr(AR+4*kc), vr(a,16) if kc else "0")
        if n+D<280: bread(n+D)
        for _ in range(3):
            if pend:
                o = pend.pop(0)
                if o: o()
        if kc==39: assert not pend
    for o in epi(6):
        if o: o()
    k.e("s_endpgm")
    k.put(l_ld)
    k.e("s_sub_u32 s42, s%d, 4", S_WID)
    k.e("v_lshlrev_b32 v1, 4, v0")
    k.e("s_lshl_b32 s44, s%d, 8", U0); k.e("s_add_u32 s44, s44, %d", CSB)
    k.dma(1, SW, "s44", ldsaddr=LP); k.dma(1, SW, "s44", off=1024)
    k.e("s_mul_i32 s45, s42, 5120"); k.e("s_mul_i32 s46, s%d, 40960", U0); k.e("s_add_u32 s46, s46, s45"); k.e("s_add_u32 s46, s46, %d", WGU_R)
    def stage(st):
        k.e("s_add_u32 s50, s46, %d", st*20480); k.e("s_add_u32 s51, s46, %d", st*20480+4096)
        k.dma(1, SW, "s50", ldsaddr=(45, (st%N)*20480))
        for i in range(1,4): k.dma(1, SW, "s50", off=1024*i)
        k.dma(1, SW, "s51", ldsaddr=(45, (st%N)*20480+4096))
    issued = N
    for st in range(N): stage(st)
    for j in range(NST):
        k.e("s_waitcnt vmcnt(%d)", 5*(issued-j-1)); k.e("s_barrier")
        if j>=2 and j-2+N<NST: stage(j-2+N); issued += 1
    k.finish()
    return k

if __name__=="__main__":
    ks = [k_prep(), k_qkv(), k_attn(), k_proj(False), k_gu(), k_proj(True)]
    order = list(ks)
    ne = int(sys.argv[2]) if len(sys.argv)>2 else 0
    if ne:
        e = G("empty_kernel", 0); e.finish(); ks.append(e); order += [e]*ne
    write_file(sys.argv[1] if len(sys.argv)>1 else "out.s", ks, order)
```

```python
import sys
from asmgen import *
def vr(a,n=4): return "v[%d:%d]"%(a,a+n-1)
def gen(name, mfma=True, reads=1, depth=10, kb=400, tovgpr=False, flags="sc1", shape=32, prio=0, valu=0, chains=1, cprio=0, vop='mul', halfwait=False, unroll=False, burst=0, cw=0, cwk='b32', br=0, lspin=0):
    k = K(name, 256, 512, 163840, vgpr=256)
    k.e("s_cmp_ge_u32 s2, 256"); end = k.label("end"); k.e("s_cbranch_scc1 %s", end)
    k.e("s_load_dwordx2 s[4:5], s[0:1], %d", A_WQKV)
    k.e("s_load_dwordx2 s[8:9], s[0:1], %d", D_WS)
    k.e("s_waitcnt lgkmcnt(0)")
    srd(k, 12, 4, 640*3840); srd(k, 20, 8, 1<<20)
    k.e("v_lshrrev_b32 v1, 6, v0"); k.e("s_nop 0"); k.e("v_readfirstlane_b32 s28, v1")
    k.e("v_lshlrev_b32 v2, 4, v0"); k.e("v_and_b32 v3, 63, v0"); k.e("v_lshlrev_b32 v3, 4, v3")
    k.e("s_lshr_b32 s29, s2, 3"); k.e("s_and_b32 s29, s29, 3"); k.e("s_mul_i32 s29, s29, %d", 400*1024)
    k.e("s_lshl_b32 s31, s28, 10")
    for i in range(50):
        k.e("s_add_u32 m0, s31, %d", (i%16)*8192); k.e("s_add_u32 s30, s29, %d", i*8192)
        k.e("buffer_load_dwordx4 v2, s[12:15], s30 offen lds")
    k.e("s_waitcnt vmcnt(0)")
    for i in range(40):
        k.e("s_mov_b32 s30, %d", 65536+i*8192)
        k.e("buffer_load_dwordx4 %s, v2, s[12:15], s30 offen", vr(96+4*i))
    for i in range(8,72): k.e("v_mov_b32 v%d, 0", i)
    k.e("s_waitcnt vmcnt(0)"); k.e("s_barrier")
    k.e("s_memtime s[40:41]"); k.e("s_memrealtime s[42:43]"); k.e("s_waitcnt lgkmcnt(0)")
    ld = k.label("ld"); fin = k.label("fin")
    k.e("s_cmp_ge_u32 s28, 4"); k.e("s_cbranch_scc1 %s", ld)
    k.e("s_mov_b32 s32, 0"); k.e("v_add_u32 v4, 150000, v3"); k.e("s_mov_b64 vcc, 0")
    if cprio: k.e("s_setprio %d", cprio)
    lp = k.label("lp"); k.put(lp)
    for n in [q%40 for q in range(280 if unroll else 40)]:
        for r in range(reads): k.e("ds_read_b128 %s, v3 offset:%d", vr(64+4*((n+7)%8)), ((n*2+r)*1024)%65536)
        if cw and n%cw==1:
            if cwk=='b32': k.e("ds_write_b32 v4, v5")
            elif cwk=='b128': k.e("ds_write_b128 v4, v[8:11]")
            elif cwk=='rd': k.e("ds_read_b32 v5, v4")
        if br and n%br==3: k.e("s_cbranch_vccnz %s", end)
        for j in range(valu):
            if vop=='mul': k.e("v_mul_f32 v%d, v%d, v%d", 48+(n*valu+j)%8, 100+n, 101+j)
            elif vop=='lsh': k.e("v_lshlrev_b32 v%d, 3, v%d", 48+(n*valu+j)%8, 100+n)
            else: k.e("v_exp_f32 v%d, v%d", 48+(n*valu+j)%8, 100+n)
        if reads and not (halfwait and n%2): k.e("s_waitcnt lgkmcnt(%d)", 5*reads)
        if mfma:
            if shape==32: k.e("v_mfma_f32_32x32x16_bf16 %s, %s, %s, %s", vr(16+16*(n%chains),16), vr(64+4*(n%8)), vr(96+4*n), vr(16+16*(n%chains),16))
            else:
                for z in range(2): k.e("v_mfma_f32_16x16x32_bf16 %s, %s, %s, %s", vr(16+4*z), vr(64+4*(n%8)), vr(96+4*((2*n+z)%40)), vr(16+4*z))
        else: k.e("s_nop 5")
    if not unroll: k.e("s_add_u32 s32, s32, 1"); k.e("s_cmp_lt_u32 s32, 7"); k.e("s_cbranch_scc1 %s", lp)
    k.e("s_branch %s", fin)
    k.put(ld)
    if prio: k.e("s_setprio %d", prio)
    k.e("s_sub_u32 s33, s28, 4"); k.e("s_lshl_b32 s33, s33, 10"); k.e("s_add_u32 s29, s29, s33"); k.e("s_add_u32 s33, s33, 65536")
    for i in range(kb//4):
        k.e("s_add_u32 s30, s29, %d", i*4096)
        if tovgpr: k.e("buffer_load_dwordx4 %s, v3, s[12:15], s30 offen %s", vr(96+4*(i%32)), flags)
        else:
            k.e("s_add_u32 m0, s33, %d", (i%20)*4096); k.e("s_nop 0")
            k.e("buffer_load_dwordx4 v3, s[12:15], s30 offen %s lds", flags)
        k.e("s_waitcnt vmcnt(%d)", depth)
        if burst and i%10==9: k.e("s_sleep %d", burst)
        if lspin and i%5==4: k.e("ds_write_b32 v3, v3"); k.e("ds_read_b32 v5, v3"); k.e("s_waitcnt lgkmcnt(0)")
    k.e("s_waitcnt vmcnt(0)")
    k.put(fin)
    k.e("s_nop 15"); k.e("s_memtime s[44:45]"); k.e("s_memrealtime s[46:47]"); k.e("s_waitcnt lgkmcnt(0)")
    k.e("s_sub_u32 s44, s44, s40"); k.e("s_sub_u32 s46, s46, s42")
    k.e("v_mov_b32 v6, s44"); k.e("v_mov_b32 v7, s46"); k.e("s_lshl_b32 s29, s2, 3"); k.e("s_add_u32 s29, s29, s28"); k.e("s_lshl_b32 s29, s29, 3"); k.e("v_mov_b32 v2, s29")
    k.e("buffer_store_dwordx2 v[6:7], v2, s[20:23], 0 offen")
    k.put(end); k.e("s_endpgm")
    return k
if __name__=="__main__":
    B = dict(valu=2,halfwait=True,unroll=True)
    cfgs = [dict(B,depth=40), dict(B,depth=40,cw=20), dict(B,depth=10,cw=20), dict(B,depth=4,cw=20), dict(B,kb=0,cw=20), dict(B,depth=40,cw=20,cwk='b128'), dict(B,depth=40,cw=20,cwk='rd'), dict(B,depth=40,br=20), dict(B,depth=40,lspin=1), dict(B,depth=10,lspin=1), dict(B,kb=200,burst=16,depth=20,cw=20)]
    import json
    for i,c in enumerate(cfgs): write_file("mb_mix_%d.s"%i, [gen("mb_kernel", **c)])
    json.dump(cfgs, open("mb_mix.json","w"))
```

```python
import sys
from asmgen import *
def gen(name, hop=0, l2touch=True, nk=15, skip=0, wait=0):
    k = K(name, 256, 512, 0, vgpr=128)
    end = k.label("end")
    k.e("s_cmp_ge_u32 s2, 256"); k.e("s_cbranch_scc1 %s", end)
    k.e("s_load_dwordx2 s[8:9], s[0:1], %d", D_WS)
    k.e("v_lshrrev_b32 v1, 6, v0"); k.e("v_and_b32 v0, 63, v0"); k.e("s_nop 0"); k.e("v_readfirstlane_b32 s3, v1")
    k.e("s_waitcnt lgkmcnt(0)")
    srd(k, 20, 8, 1<<20)
    if l2touch:
        k.e("s_getpc_b64 s[42:43]"); k.e("v_lshlrev_b32 v2, 7, v0"); k.e("s_lshl_b32 s41, s3, 13"); k.e("v_add_u32 v2, s41, v2"); k.e("v_min_u32 v2, %d, v2", nk*1024+2048)
        k.e("global_load_dword v3, v2, s[42:43]"); k.e("s_waitcnt vmcnt(0)")
    k.e("s_barrier")
    body = k.label("body"); back = k.label("back")
    if hop:
        k.e("s_cmp_lg_u32 s3, 7"); k.e("s_cbranch_scc1 %s", back)
        k.e("s_mov_b64 exec, 0"); k.e("s_branch %s", body)
        k.put(back); k.e("s_mov_b64 exec, -1")
    if wait: k.e("s_sleep %d", wait)
    k.e("s_barrier")
    for i in range(16): k.e("s_mov_b32 s%d, 0", 50+2*i)
    k.e("s_cmp_ge_u32 s3, 4"); k.e("s_cbranch_scc1 %s", end)
    k.e("s_branch %s", body)
    k.e(".p2align 12")
    k.put(body)
    pads = [k.label("pad") for _ in range(nk*1024//max(hop,1)+3)] if hop else []
    pi = 0
    for b in range(nk):
        for q in range(32):
            off = b*1024+q*32
            if q==0: first = "s_memtime s[%d:%d]"%(50+2*b, 51+2*b)
            else: first = "v_add_u32 v10, 0x12345, v10"
            if hop and off%hop==0:
                k.put(pads[pi]); pi += 1
                k.e("s_cbranch_execz %s", pads[pi]); k.e("s_nop 0")
            else: k.e("v_add_u32 v11, 0x12345, v11")
            k.e(first)
            if skip and off%4096==0:
                tl = k.label("sk"); k.e("s_branch %s", tl); k.e("s_nop 0"); k.e("v_add_u32 v12, 0x12345, v12"); continue
            if skip and off%4096==skip: k.put(tl)
            k.e("v_mfma_f32_32x32x16_bf16 v[16:31], v[4:7], v[4:7], v[16:31]")
            k.e("v_add_u32 v12, 0x12345, v12")
    k.e("s_memtime s[%d:%d]", 50+2*nk, 51+2*nk)
    k.e("s_waitcnt lgkmcnt(0)")
    for i in range(16): k.e("v_writelane_b32 v1, s%d, %d", 50+2*i, i)
    k.e("s_lshl_b32 s44, s2, 2"); k.e("s_add_u32 s44, s44, s3"); k.e("s_lshl_b32 s44, s44, 6"); k.e("v_lshlrev_b32 v2, 2, v0")
    k.e("s_mov_b64 exec, 0xffff")
    k.e("buffer_store_dword v1, v2, s[20:23], s44 offen")
    k.e("s_endpgm")
    if hop:
        k.put(pads[pi]); k.e("s_branch %s", back)
    k.put(end); k.e("s_endpgm")
    return k
if __name__=="__main__":
    cfgs = [dict(hop=4096,l2touch=False,skip=z,wait=100) for z in (256,512,992,2016,3040)] + [dict(hop=0,l2touch=False,skip=992,wait=100)]
    import json
    for i,c in enumerate(cfgs): write_file("mb_ic_%d.s"%i, [gen("mb_kernel", **c)])
    json.dump(cfgs, open("mb_ic.json","w"))
```
